```python
import torch

def _softmax(x, axis=-1):
    return torch.softmax(x, dim=axis)

def _gelu(x):
    return torch.nn.functional.gelu(x, approximate='tanh')

def _silu(x):
    return torch.nn.functional.silu(x)

def _sigmoid(x):
    return torch.sigmoid(x)

def _layernorm(x, axis=-1, eps=1e-05):
    m = x.mean(dim=axis, keepdim=True)
    v = x.var(dim=axis, keepdim=True, unbiased=False)
    return (x - m) / torch.sqrt(v + eps)

def _scatter_add(tgt, idx, src, axis=0):
    return tgt.clone().index_add_(axis, idx, src)

def _segment_sum(src, seg, n):
    out = torch.zeros((n,) + src.shape[1:], dtype=src.dtype)
    return out.index_add_(0, seg, src)

def _pad(x, pw):
    flat = tuple((v for pair in reversed(pw) for v in pair))
    return torch.nn.functional.pad(x, flat)
kernel_name = 'adaLN_cond__mha_block__glu_gated_bilinear__prompt'

def setup_inputs():

    _w = lambda a: (lambda t: t.to(torch.bfloat16) if t.is_floating_point() else t)(torch.as_tensor(a))

    def _A_setup():
        B, S, D, H = (1, 2048, 1024, 32)
        return {'x': _w((lambda *s: torch.randn(*s, dtype=torch.bfloat16) * 0.05)(B, S, D)), 'wqkv': _w((lambda *s: torch.randn(*s, dtype=torch.bfloat16) * 0.05)(D, 3 * D)), 'wo': _w((lambda *s: torch.randn(*s, dtype=torch.bfloat16) * 0.05)(D, D))}
    _A_in = _A_setup()

    def _B_setup():
        B, S, D, F = (1, 2048, 1024, 3584)
        return {'x': _w((lambda *s: torch.randn(*s, dtype=torch.bfloat16) * 0.05)(B, S, D)), 'w_gate': _w((lambda *s: torch.randn(*s, dtype=torch.bfloat16) * 1.6)(D, F) * D ** (-0.5)), 'w_up': _w((lambda *s: torch.randn(*s, dtype=torch.bfloat16) * 1.6)(D, F) * D ** (-0.5)), 'w_down': _w((lambda *s: torch.randn(*s, dtype=torch.bfloat16) * 1.6)(F, D) * F ** (-0.5))}
    _B_in = _B_setup()
    return {'A_x': _A_in['x'], 'A_wqkv': _A_in['wqkv'], 'A_wo': _A_in['wo'], 'B_x': _B_in['x'], 'B_w_gate': _B_in['w_gate'], 'B_w_up': _B_in['w_up'], 'B_w_down': _B_in['w_down'], 'c': _w((lambda *s: torch.randn(*s, dtype=torch.bfloat16) * 0.2)(1, 1024) * 8.0), 'w_mod': _w((lambda *s: torch.randn(*s, dtype=torch.bfloat16) * 0.2)(1024, 6 * 1024) * 1024 ** (-0.5) * 8.0)}

def reference(A_x, A_wqkv, A_wo, B_x, B_w_gate, B_w_up, B_w_down, c, w_mod):

    def _A_ref(x, wqkv, wo):
        B, S, D = x.shape
        H = 32
        Dh = D // H
        qkv = (lambda x, *d: x.permute(*d))((x @ wqkv).reshape(B, S, 3, H, Dh), 2, 0, 3, 1, 4)
        q, k, v = (qkv[0], qkv[1], qkv[2])
        scores = torch.einsum('bhqd,bhkd->bhqk', q, k) * Dh ** (-0.5)
        p = _softmax(scores, axis=-1)
        o = torch.einsum('bhqk,bhkd->bhqd', p, v)
        return (lambda x, *d: x.permute(*d))(o, 0, 2, 1, 3).reshape(B, S, D) @ wo

    def _B_ref(x, w_gate, w_up, w_down):
        g = torch.einsum('bsd,df->bsf', x, w_gate)
        u = torch.einsum('bsd,df->bsf', x, w_up)
        h = g * u
        return torch.einsum('bsf,fd->bsd', h, w_down)
    x = A_x
    mod = (_silu(c) @ w_mod).reshape(c.shape[0], 6, 1, -1)
    sa, ca, ga, sb, cb, gb = (mod[:, 0].clone(), mod[:, 1].clone(), mod[:, 2].clone(), mod[:, 3].clone(), mod[:, 4].clone(), mod[:, 5].clone())
    h = _layernorm(x, axis=-1) * (1 + ca) + sa
    x = x + ga * _A_ref(h, A_wqkv, A_wo)
    h = _layernorm(x, axis=-1) * (1 + cb) + sb
    x = x + gb * _B_ref(h, B_w_gate, B_w_up, B_w_down)
    return x
```

```python
KA_X, KA_WQKV, KA_WO, KA_BX, KA_WG, KA_WU, KA_WD, KA_C, KA_WMOD, KA_OUT, KA_DBG, KA_WS = [8*i for i in range(12)]

MB = 1 << 20
WS_MOD = 0
WS_H1 = 1 * MB
WS_Q = 5 * MB
WS_O = 17 * MB
WS_X1 = 21 * MB
WS_H2 = 25 * MB
WS_HH = 29 * MB

S = 2048
D = 1024
F = 3584


class Kern:
    def __init__(self, name):
        self.name = name
        self.L = []
        self.nlab = 0

    def e(self, s):
        self.L.append("    " + s)

    def c(self, s):
        self.L.append("    ; " + s)

    def lab(self, l):
        self.L.append(l + ":")

    def newlab(self, base="L"):
        self.nlab += 1
        return f"{self.name}_{base}{self.nlab}"

    def srd(self, sreg, lo, hi, nbytes):
        self.e(f"s_mov_b32 s{sreg}, s{lo}")
        self.e(f"s_and_b32 s{sreg+1}, s{hi}, 0xffff")
        self.e(f"s_mov_b32 s{sreg+2}, {nbytes}")
        self.e(f"s_mov_b32 s{sreg+3}, 0x00020000")

    def srd_off(self, sreg, lo, hi, off, nbytes):
        self.e(f"s_add_u32 s{sreg}, s{lo}, {off}")
        self.e(f"s_addc_u32 s{sreg+1}, s{hi}, 0")
        self.e(f"s_and_b32 s{sreg+1}, s{sreg+1}, 0xffff")
        self.e(f"s_mov_b32 s{sreg+2}, {nbytes}")
        self.e(f"s_mov_b32 s{sreg+3}, 0x00020000")

    def text(self, vgpr, agpr=0, sgpr=96):
        acc_off = (vgpr + 3) // 4 * 4
        nfv = acc_off + agpr if agpr else vgpr
        out = []
        out.append(f".globl {self.name}")
        out.append(".p2align 8")
        out.append(f".type {self.name},@function")
        out.append(f"{self.name}:")
        out += self.L
        out.append("    s_endpgm")
        kd = []
        kd.append(f".amdhsa_kernel {self.name}")
        kd.append(f"  .amdhsa_next_free_vgpr {nfv}")
        kd.append(f"  .amdhsa_next_free_sgpr {sgpr}")
        kd.append(f"  .amdhsa_accum_offset {acc_off}")
        kd.append("  .amdhsa_group_segment_fixed_size 0")
        kd.append("  .amdhsa_kernarg_size 96")
        kd.append("  .amdhsa_user_sgpr_count 2")
        kd.append("  .amdhsa_user_sgpr_kernarg_segment_ptr 1")
        kd.append("  .amdhsa_system_sgpr_workgroup_id_x 1")
        kd.append("  .amdhsa_float_denorm_mode_32 3")
        kd.append("  .amdhsa_float_denorm_mode_16_64 3")
        kd.append(".end_amdhsa_kernel")
        return "\n".join(out), "\n".join(kd)


def interleave(main, fill, start=0, per=None):
    out = []
    n = len(main)
    nf = len(fill)
    if n == 0:
        for f in fill:
            out += f if isinstance(f, list) else [f]
        return out
    fi = 0
    slots = max(1, n - start)
    for i, m in enumerate(main):
        out.append(m)
        if i < start:
            continue
        j = i - start + 1
        if per is None:
            tgt = (nf * j + slots - 1) // slots
        else:
            tgt = min(nf, per * j)
        while fi < tgt:
            f = fill[fi]
            out += f if isinstance(f, list) else [f]
            fi += 1
    while fi < nf:
        f = fill[fi]
        out += f if isinstance(f, list) else [f]
        fi += 1
    return out
```

```python
from common import *

def gen_attn():
    name = "attn_kernel"
    k = Kern(name)
    NWG = 256
    NS = 4
    SK = 128
    STAGE = 2 * SK * 64
    VOFFL = SK * 64
    NST = S // SK
    NTILE = S // 32
    TPS = SK // 32
    THR = "0x41000000"

    v = 1
    def alloc(n, align=1):
        nonlocal v
        v = (v + align - 1) // align * align
        r = v
        v += n
        return r
    VT = alloc(7)
    VD = alloc(2)
    VKA = alloc(2)
    VVA = alloc(1)
    VQ = alloc(8, 4)
    VONE = alloc(4, 4)
    VS = [alloc(16, 4), alloc(16, 4)]
    VC = alloc(16, 4)
    VO = alloc(16, 4)
    VL = alloc(16, 4)
    VK = [alloc(8, 4), alloc(8, 4)]
    VV = [alloc(8, 4), alloc(8, 4)]
    VP = alloc(8, 4)
    VM = alloc(4)
    NV = v
    t0, t1, t2, t3 = VT, VT + 1, VT + 2, VT + 3

    k.e(f"s_cmp_ge_u32 s2, {NWG}")
    k.e(f"s_cbranch_scc1 {name}_end")
    k.e(f"s_load_dwordx2 s[4:5], s[0:1], {KA_WS}")
    k.e(f"v_lshrrev_b32 v{t0}, 6, v0")
    k.e("v_and_b32 v0, 63, v0")
    k.e("s_nop 0")
    k.e(f"v_readfirstlane_b32 s30, v{t0}")
    k.e("s_and_b32 s28, s2, 31")
    k.e("s_lshr_b32 s29, s2, 5")
    k.e("s_waitcnt lgkmcnt(0)")
    k.e("s_lshl_b32 s31, s28, 17")
    k.e(f"s_add_u32 s32, s4, s31")
    k.e("s_addc_u32 s33, s5, 0")
    k.srd_off(8, 32, 33, WS_Q, 131072)
    k.srd_off(12, 32, 33, WS_Q + 4 * MB, 131072)
    k.srd_off(16, 32, 33, WS_Q + 8 * MB, 131072)
    k.srd_off(20, 4, 5, WS_O, S * D * 2)
    k.e(f"v_lshrrev_b32 v{t0}, 2, v0")
    k.e(f"v_and_b32 v{t1}, 3, v0")
    k.e(f"v_lshrrev_b32 v{t2}, 4, v0")
    k.e(f"v_xor_b32 v{t1}, v{t1}, v{t2}")
    k.e(f"v_lshlrev_b32 v{t0}, 6, v{t0}")
    k.e(f"v_lshl_add_u32 v{t0}, v{t1}, 4, v{t0}")
    k.e("s_lshl_b32 s31, s30, 10")
    k.e(f"v_add_u32 v{VD}, s31, v{t0}")
    k.e(f"v_lshlrev_b32 v{t0}, 4, v0")
    k.e(f"v_add_u32 v{VD+1}, s31, v{t0}")
    k.e("s_mov_b32 s40, s31")

    def dma_stage(s_):
        b = s_ % NS
        return [[f"s_mov_b32 s42, {s_*SK*64}",
                 f"s_add_u32 m0, s40, {b*STAGE}",
                 "s_nop 0",
                 f"buffer_load_dwordx4 v{VD}, s[12:15], s42 offen lds"],
                [f"s_add_u32 m0, s40, {b*STAGE + VOFFL}",
                 "s_nop 0",
                 f"buffer_load_dwordx4 v{VD+1}, s[16:19], s42 offen lds"]]

    k.e(f"v_and_b32 v{t0}, 31, v0")
    k.e(f"v_lshrrev_b32 v{t1}, 5, v0")
    k.e("s_lshl_b32 s31, s29, 8")
    k.e("s_lshl_b32 s34, s30, 5")
    k.e("s_add_u32 s34, s34, s31")
    k.e(f"v_add_u32 v{t2}, s34, v{t0}")
    k.e(f"v_lshlrev_b32 v{t3}, 6, v{t2}")
    k.e(f"v_lshl_add_u32 v{t3}, v{t1}, 4, v{t3}")
    k.e(f"buffer_load_dwordx4 v[{VQ}:{VQ+3}], v{t3}, s[8:11], 0 offen")
    k.e(f"buffer_load_dwordx4 v[{VQ+4}:{VQ+7}], v{t3}, s[8:11], 0 offen offset:32")
    for s_ in range(2):
        for grp in dma_stage(s_):
            for x in grp:
                k.e(x)
    k.e(f"v_lshlrev_b32 v{VT+4}, 11, v{t2}")
    k.e(f"v_lshl_add_u32 v{VT+4}, v{t1}, 4, v{VT+4}")
    k.e("s_lshl_b32 s31, s28, 6")
    k.e(f"v_add_u32 v{VT+4}, s31, v{VT+4}")
    k.e(f"v_bfe_u32 v{t2}, v{t0}, 2, 2")
    k.e(f"v_xor_b32 v{t2}, v{t2}, v{t1}")
    k.e(f"v_lshlrev_b32 v{t3}, 6, v{t0}")
    k.e(f"v_lshl_add_u32 v{VKA}, v{t2}, 4, v{t3}")
    k.e(f"v_xor_b32 v{VKA+1}, 32, v{VKA}")
    k.e(f"v_and_b32 v{t0}, 15, v0")
    k.e(f"v_bfe_u32 v{t2}, v0, 4, 1")
    k.e(f"v_lshrrev_b32 v{t3}, 2, v{t0}")
    k.e(f"v_lshl_add_u32 v{t3}, v{t1}, 2, v{t3}")
    k.e(f"v_lshlrev_b32 v{t3}, 6, v{t3}")
    k.e(f"v_lshl_add_u32 v{t3}, v{t2}, 5, v{t3}")
    k.e(f"v_and_b32 v{t0}, 3, v{t0}")
    k.e(f"v_lshl_add_u32 v{t3}, v{t0}, 3, v{t3}")
    k.e(f"v_add_u32 v{VVA}, {VOFFL}, v{t3}")
    for i in range(4):
        k.e(f"v_mov_b32 v{VONE+i}, 0x3f803f80")
    for i in range(16):
        k.e(f"v_mov_b32 v{VO+i}, 0")
        k.e(f"v_mov_b32 v{VL+i}, 0")

    def kreads(t):
        b = (t // TPS) % NS
        off = b * STAGE + (t % TPS) * 2048
        r = VK[t % 2]
        return [f"ds_read_b128 v[{r}:{r+3}], v{VKA} offset:{off}",
                f"ds_read_b128 v[{r+4}:{r+7}], v{VKA+1} offset:{off}"]

    def vreads(t):
        b = (t // TPS) % NS
        off = b * STAGE + (t % TPS) * 2048
        r = VV[t % 2]
        out = []
        for s_ in range(2):
            for rd in range(2):
                o = off + (16 * s_ + 8 * rd) * 64
                out.append(f"ds_read_b64_tr_b16 v[{r+4*s_+2*rd}:{r+4*s_+2*rd+1}], v{VVA} offset:{o}")
        return out

    def smfma(t, first=False):
        r = VK[t % 2]
        s_ = VS[t % 2]
        c = "0" if first else f"v[{VC}:{VC+15}]"
        return [f"v_mfma_f32_32x32x16_bf16 v[{s_}:{s_+15}], v[{r}:{r+3}], v[{VQ}:{VQ+3}], {c}",
                f"v_mfma_f32_32x32x16_bf16 v[{s_}:{s_+15}], v[{r+4}:{r+7}], v[{VQ+4}:{VQ+7}], v[{s_}:{s_+15}]"]

    def barrier_for_stage(s_):
        later = 2 if s_ + 1 < NST else 0
        k.e(f"s_waitcnt vmcnt({later}) lgkmcnt(0)")
        k.e("s_barrier")
        if s_ + 2 < NST:
            for grp in dma_stage(s_ + 2):
                for x in grp:
                    k.e(x)

    barrier_for_stage(0)
    for x in kreads(0) + kreads(1) + vreads(0):
        k.e(x)
    k.e("s_waitcnt lgkmcnt(6)")
    for x in smfma(0, first=True):
        k.e(x)
    rescue = []
    for t in range(NTILE):
        sc = VS[t % 2]
        sn = VS[(t + 1) % 2]
        if (t + 2) % TPS == 0 and (t + 2) // TPS < NST:
            barrier_for_stage((t + 2) // TPS)
        first = (t == 0)
        if first:
            k.e("s_nop 15")
            k.e(f"v_max3_f32 v{VM}, v{sc}, v{sc+1}, v{sc+2}")
            for r in range(3, 15, 2):
                k.e(f"v_max3_f32 v{VM}, v{VM}, v{sc+r}, v{sc+r+1}")
            k.e(f"v_max_f32 v{VM}, v{VM}, v{sc+15}")
            k.e(f"v_mov_b32 v{VM+1}, v{VM}")
            k.e("s_nop 1")
            k.e(f"v_permlane32_swap_b32 v{VM}, v{VM+1}")
            k.e(f"v_max_f32 v{VM}, v{VM}, v{VM+1}")
            for r in range(16):
                k.e(f"v_sub_f32 v{sc+r}, v{sc+r}, v{VM}")
                k.e(f"v_sub_f32 v{VC+r}, 0, v{VM}")
            k.e("s_nop 1")
        if t + 1 < NTILE:
            k.e("s_waitcnt lgkmcnt(4)")
            for x in smfma(t + 1):
                k.e(x)
        rd = []
        if t + 2 < NTILE:
            rd += kreads(t + 2)
        if t + 1 < NTILE:
            rd += vreads(t + 1)
        if not first:
            mx = [f"v_max3_f32 v{VM}, v{sc}, v{sc+1}, v{sc+2}"]
            for r in range(3, 15, 2):
                mx.append(f"v_max3_f32 v{VM}, v{VM}, v{sc+r}, v{sc+r+1}")
            mx.append(f"v_max_f32 v{VM}, v{VM}, v{sc+15}")
            for x in interleave(mx, rd):
                k.e(x)
            lab = k.newlab("resc")
            back = k.newlab("back")
            k.e(f"v_cmp_lt_f32 vcc, {THR}, v{VM}")
            k.e(f"s_cbranch_vccnz {lab}")
            k.lab(back)
            rescue.append((lab, back, t))
        else:
            for x in rd:
                k.e(x)
        for r in range(16):
            k.e(f"v_exp_f32 v{sc+r}, v{sc+r}")
        for j in range(8):
            k.e(f"v_cvt_pk_bf16_f32 v{VP+j}, v{sc+2*j}, v{sc+2*j+1}")
        nrd = len(rd)
        k.e(f"s_waitcnt lgkmcnt({nrd})")
        vr = VV[t % 2]
        k.e(f"v_mfma_f32_32x32x16_bf16 v[{VO}:{VO+15}], v[{vr}:{vr+3}], v[{VP}:{VP+3}], v[{VO}:{VO+15}]")
        k.e(f"v_mfma_f32_32x32x16_bf16 v[{VL}:{VL+15}], v[{VONE}:{VONE+3}], v[{VP}:{VP+3}], v[{VL}:{VL+15}]")
        k.e(f"v_mfma_f32_32x32x16_bf16 v[{VO}:{VO+15}], v[{vr+4}:{vr+7}], v[{VP+4}:{VP+7}], v[{VO}:{VO+15}]")
        k.e(f"v_mfma_f32_32x32x16_bf16 v[{VL}:{VL+15}], v[{VONE}:{VONE+3}], v[{VP+4}:{VP+7}], v[{VL}:{VL+15}]")
    k.e("s_nop 15")
    k.e("s_nop 3")
    k.e(f"v_rcp_f32 v{VM}, v{VL}")
    k.e("s_nop 0")
    for r in range(16):
        k.e(f"v_mul_f32 v{VO+r}, v{VO+r}, v{VM}")
    P = VS[0]
    for g in range(4):
        k.e(f"v_cvt_pk_bf16_f32 v{P+2*g}, v{VO+4*g}, v{VO+4*g+1}")
        k.e(f"v_cvt_pk_bf16_f32 v{P+2*g+1}, v{VO+4*g+2}, v{VO+4*g+3}")
    k.e("s_nop 1")
    for gp in range(2):
        k.e(f"v_permlane32_swap_b32 v{P+4*gp}, v{P+4*gp+2}")
        k.e(f"v_permlane32_swap_b32 v{P+4*gp+1}, v{P+4*gp+3}")
    for gp in range(2):
        k.e(f"buffer_store_dwordx4 v[{P+4*gp}:{P+4*gp+3}], v{VT+4}, s[20:23], 0 offen offset:{gp*32}")
    k.e("s_endpgm")
    for lab, back, t in rescue:
        sc = VS[t % 2]
        sn = VS[(t + 1) % 2]
        k.lab(lab)
        k.e(f"v_mov_b32 v{VM+1}, v{VM}")
        k.e("s_nop 1")
        k.e(f"v_permlane32_swap_b32 v{VM}, v{VM+1}")
        k.e(f"v_max_f32 v{VM}, v{VM}, v{VM+1}")
        k.e(f"v_max_f32 v{VM}, 0, v{VM}")
        k.e("s_nop 15")
        k.e("s_nop 15")
        k.e(f"v_sub_f32 v{VM+1}, 0, v{VM}")
        k.e(f"v_exp_f32 v{VM+1}, v{VM+1}")
        for r in range(16):
            k.e(f"v_sub_f32 v{sc+r}, v{sc+r}, v{VM}")
            k.e(f"v_sub_f32 v{VC+r}, v{VC+r}, v{VM}")
            if t + 1 < NTILE:
                k.e(f"v_sub_f32 v{sn+r}, v{sn+r}, v{VM}")
            k.e(f"v_mul_f32 v{VO+r}, v{VO+r}, v{VM+1}")
            k.e(f"v_mul_f32 v{VL+r}, v{VL+r}, v{VM+1}")
        k.e("s_nop 1")
        k.e(f"s_branch {back}")
    k.lab(f"{name}_end")
    return k, dict(grid=NWG, block=512, lds=NS * STAGE, vgpr=NV)
```

```python
from common import *

QSCALE = 0x3E8293EE
import struct
def f32bits(x):
    return struct.unpack("<I", struct.pack("<f", x))[0]
QSCALE = f32bits((32 ** -0.5) * 1.4426950408889634)


def gen_gemm(name, kind, WM, WN, MT, NT, K, NS, U, x_ws_off, ldw):
    k = Kern(name)
    BM = 32 * MT * WM
    T = K // 64
    NU = 4 // U
    XB = BM * 128
    two = (kind == 'gu')
    if two:
        RW = 224
        REGB = 64 * RW
        UOFF = REGB + 128
        WB = UOFF + REGB
        NBLK_COLS = 112
    else:
        RW = 64 * NT * WN
        REGB = 64 * RW
        WB = REGB
        NBLK_COLS = 32 * NT * WN
    CPR = RW // 16
    STAGE = (XB + WB + 255) // 256 * 256
    LDS = STAGE * NS
    nx = XB // 1024 // 4
    nw = (2 * REGB if two else REGB) // 1024 // 4
    G = nx + nw
    nmb = S // BM
    if kind == 'qkv':
        nnb = 3072 // NBLK_COLS
    elif kind == 'gu':
        nnb = F // NBLK_COLS
    else:
        nnb = 1024 // NBLK_COLS
    NWG = nmb * nnb
    assert NWG == 256

    v = 1
    def alloc(n, align=1):
        nonlocal v
        v = (v + align - 1) // align * align
        r = v
        v += n
        return r
    VT = alloc(6)
    VDX = alloc(nx)
    VDW = alloc(nw)
    VXA = alloc(4 * NS)
    VWA = alloc(NS)
    nfr = U * (4 * MT + 4 * NT)
    VF = [alloc(nfr, 4), alloc(nfr, 4)]
    def xfrag(s, kl, mt):
        r = VF[s] + kl * (4 * MT + 4 * NT) + 4 * mt
        return r
    def wfrag(s, kl, nt):
        r = VF[s] + kl * (4 * MT + 4 * NT) + 4 * MT + 4 * nt
        return r
    VE = alloc(64, 4)
    NV = v
    NA = 16 * MT * NT
    def acc(mt, nt):
        return (mt * NT + nt) * 16

    K2 = K * 2
    k.e(f"s_cmp_ge_u32 s2, {NWG}")
    k.e(f"s_cbranch_scc1 {name}_end")
    wka = {'qkv': KA_WQKV, 'wo': KA_WO, 'gu': KA_WG, 'down': KA_WD}[kind]
    k.e(f"s_load_dwordx2 s[4:5], s[0:1], {KA_WS}")
    k.e(f"s_load_dwordx2 s[6:7], s[0:1], {wka}")
    if two:
        k.e(f"s_load_dwordx2 s[32:33], s[0:1], {KA_WU}")
    if kind == 'wo':
        k.e(f"s_load_dwordx2 s[34:35], s[0:1], {KA_X}")
    if kind == 'down':
        k.e(f"s_load_dwordx2 s[34:35], s[0:1], {KA_OUT}")
    k.e(f"v_lshrrev_b32 v{VT}, 6, v0")
    k.e(f"v_and_b32 v0, 63, v0")
    k.e("s_nop 0")
    k.e(f"v_readfirstlane_b32 s30, v{VT}")
    if nmb == 8:
        k.e("s_and_b32 s28, s2, 7")
        k.e("s_lshr_b32 s29, s2, 3")
    else:
        assert nmb == 16
        k.e("s_and_b32 s28, s2, 7")
        k.e("s_lshl_b32 s28, s28, 1")
        k.e("s_bfe_u32 s31, s2, 0x10003")
        k.e("s_add_u32 s28, s28, s31")
        k.e("s_lshr_b32 s29, s2, 4")
    k.e("s_waitcnt lgkmcnt(0)")
    k.srd_off(8, 4, 5, x_ws_off, S * K2)
    wbytes = K * ldw * 2
    if two:
        k.e("s_cmp_ge_u32 s30, 2")
        k.e("s_cselect_b32 s6, s32, s6")
        k.e("s_cselect_b32 s7, s33, s7")
    k.srd(12, 6, 7, wbytes)
    if kind == 'qkv':
        k.srd_off(16, 4, 5, WS_Q, 12 * MB)
    elif kind == 'wo':
        k.srd_off(16, 4, 5, WS_X1, S * D * 2)
        k.srd(20, 34, 35, S * D * 2)
        k.srd_off(24, 4, 5, WS_MOD + 2 * 4096, 4096)
    elif kind == 'gu':
        k.srd_off(16, 4, 5, WS_HH, S * F * 2)
    else:
        k.srd(16, 34, 35, S * D * 2)
        k.srd_off(20, 4, 5, WS_X1, S * D * 2)
        k.srd_off(24, 4, 5, WS_MOD + 5 * 4096, 4096)

    t0, t1, t2, t3 = VT, VT + 1, VT + 2, VT + 3
    k.e(f"v_lshrrev_b32 v{t0}, 3, v0")
    k.e(f"v_and_b32 v{t1}, 7, v0")
    k.e(f"s_mul_i32 s31, s30, {nx*8}")
    k.e(f"s_mul_i32 s36, s28, {BM}")
    k.e("s_add_u32 s36, s36, s31")
    for i in range(nx):
        k.e(f"s_mul_i32 s37, s30, {nx}")
        k.e(f"s_add_u32 s37, s37, {i}")
        k.e("s_and_b32 s37, s37, 1")
        k.e("s_lshl_b32 s37, s37, 2")
        k.e(f"v_lshrrev_b32 v{t2}, 1, v{t0}")
        k.e(f"v_add_u32 v{t2}, s37, v{t2}")
        k.e(f"v_xor_b32 v{t2}, v{t2}, v{t1}")
        k.e(f"v_add_u32 v{t3}, s36, v{t0}")
        k.e(f"v_add_u32 v{t3}, {8*i}, v{t3}")
        k.e(f"s_mov_b32 s37, {K2}")
        k.e(f"v_mul_lo_u32 v{t3}, v{t3}, s37")
        k.e(f"v_lshl_add_u32 v{VDX+i}, v{t2}, 4, v{t3}")
    magic = (65536 + CPR - 1) // CPR
    if two:
        k.e("s_and_b32 s31, s30, 1")
    else:
        k.e("s_mov_b32 s31, s30")
    k.e(f"s_mul_i32 s31, s31, {nw*64}")
    k.e(f"s_mul_i32 s38, s29, {NBLK_COLS*2}")
    for i in range(nw):
        k.e(f"v_add_u32 v{t0}, s31, v0")
        if i:
            k.e(f"v_add_u32 v{t0}, {64*i}, v{t0}")
        k.e(f"v_mul_u32_u24 v{t1}, {magic}, v{t0}")
        k.e(f"v_lshrrev_b32 v{t1}, 16, v{t1}")
        k.e(f"v_mul_u32_u24 v{t2}, {CPR}, v{t1}")
        k.e(f"v_sub_u32 v{t2}, v{t0}, v{t2}")
        if RW == 128:
            k.e(f"v_lshlrev_b32 v{t3}, 1, v{t1}")
            k.e(f"v_and_b32 v{t3}, 4, v{t3}")
            k.e(f"v_xor_b32 v{t2}, v{t2}, v{t3}")
        k.e(f"v_mul_u32_u24 v{t1}, {ldw*2}, v{t1}")
        k.e(f"v_lshl_add_u32 v{t1}, v{t2}, 4, v{t1}")
        k.e(f"v_add_u32 v{VDW+i}, s38, v{t1}")
    k.e(f"s_mul_i32 s40, s30, {nx*1024}")
    if two:
        k.e("s_and_b32 s41, s30, 1")
        k.e(f"s_mul_i32 s41, s41, {nw*1024}")
        k.e("s_cmp_ge_u32 s30, 2")
        k.e(f"s_cselect_b32 s31, {UOFF}, 0")
        k.e("s_add_u32 s41, s41, s31")
        k.e(f"s_add_u32 s41, s41, {XB}")
    else:
        k.e(f"s_mul_i32 s41, s30, {nw*1024}")
        k.e(f"s_add_u32 s41, s41, {XB}")

    def dma_stage(t):
        b = t % NS
        out = []
        out.append(f"s_mov_b32 s42, {t*128}")
        out.append(f"s_mov_b32 s43, {t*64*ldw*2}")
        res = [out]
        for i in range(nx):
            res.append([f"s_add_u32 m0, s40, {b*STAGE + i*1024}",
                        "s_nop 0",
                        f"buffer_load_dwordx4 v{VDX+i}, s[8:11], s42 offen lds"])
        for i in range(nw):
            res.append([f"s_add_u32 m0, s41, {b*STAGE + i*1024}",
                        "s_nop 0",
                        f"buffer_load_dwordx4 v{VDW+i}, s[12:15], s43 offen lds"])
        return res

    for t in range(min(NS, T)):
        for grp in dma_stage(t):
            for s_ in grp:
                k.e(s_)

    if WN == 1:
        k.e("s_mov_b32 s44, s30")
        k.e("s_mov_b32 s45, 0")
    else:
        assert WN == 2 and WM == 2
        k.e("s_lshr_b32 s44, s30, 1")
        k.e("s_and_b32 s45, s30, 1")
    k.e(f"v_and_b32 v{t0}, 31, v0")
    k.e(f"v_lshrrev_b32 v{t1}, 5, v0")
    k.e(f"v_bfe_u32 v{t2}, v{t0}, 1, 3")
    k.e(f"v_xor_b32 v{t2}, v{t2}, v{t1}")
    k.e(f"s_mul_i32 s31, s44, {MT*32*128}")
    k.e(f"v_lshlrev_b32 v{t3}, 7, v{t0}")
    k.e(f"v_lshl_add_u32 v{t3}, v{t2}, 4, v{t3}")
    k.e(f"v_add_u32 v{t3}, s31, v{t3}")
    for b in range(NS):
        for kk in range(4):
            r = VXA + 4 * b + kk
            if kk:
                k.e(f"v_xor_b32 v{r}, {kk*32}, v{t3}")
                if b:
                    k.e(f"v_add_u32 v{r}, {b*STAGE}, v{r}")
            else:
                if b:
                    k.e(f"v_add_u32 v{r}, {b*STAGE}, v{t3}")
                else:
                    k.e(f"v_mov_b32 v{r}, v{t3}")
    k.e(f"v_and_b32 v{t0}, 15, v0")
    k.e(f"v_bfe_u32 v{t1}, v0, 4, 1")
    k.e(f"v_lshrrev_b32 v{t2}, 5, v0")
    k.e(f"v_lshrrev_b32 v{t3}, 2, v{t0}")
    k.e(f"v_lshl_add_u32 v{t3}, v{t2}, 3, v{t3}")
    k.e(f"v_mul_u32_u24 v{t3}, {RW}, v{t3}")
    k.e(f"v_and_b32 v{t2}, 3, v{t0}")
    k.e(f"v_lshl_add_u32 v{t3}, v{t2}, 3, v{t3}")
    if two:
        k.e(f"v_mul_u32_u24 v{t1}, {UOFF}, v{t1}")
        k.e(f"v_add_u32 v{t3}, v{t3}, v{t1}")
    else:
        k.e(f"v_lshl_add_u32 v{t3}, v{t1}, 5, v{t3}")
        k.e(f"s_mul_i32 s31, s45, {NT*64}")
        k.e(f"v_add_u32 v{t3}, s31, v{t3}")
        if RW == 128:
            k.e(f"v_lshlrev_b32 v{t2}, 3, v{t0}")
            k.e(f"v_and_b32 v{t2}, 64, v{t2}")
            k.e(f"v_xor_b32 v{t3}, v{t3}, v{t2}")
    for b in range(NS):
        k.e(f"v_add_u32 v{VWA+b}, {XB + b*STAGE}, v{t3}")
    TCB = 32 if two else 64

    def reads(t, u):
        b = t % NS
        s_ = (t * NU + u) % 2
        out = []
        for kl in range(U):
            kk = u * U + kl
            for mt in range(MT):
                r = xfrag(s_, kl, mt)
                out.append(f"ds_read_b128 v[{r}:{r+3}], v{VXA+4*b+kk} offset:{mt*4096}")
            for nt in range(NT):
                r = wfrag(s_, kl, nt)
                for rd in range(2):
                    off = kk * 16 * RW + rd * 4 * RW + nt * TCB
                    out.append(f"ds_read_b64_tr_b16 v[{r+2*rd}:{r+2*rd+1}], v{VWA+b} offset:{off}")
        return out

    k.e(f"s_waitcnt vmcnt({G*(min(NS,T)-1)})")
    k.e("s_barrier")
    for s_ in reads(0, 0):
        k.e(s_)

    for t in range(T):
        for u in range(NU):
            fill = []
            last_u = (u == NU - 1)
            if last_u and t + 1 < T:
                issued = min(T - 1, t + NS - 1)
                k.e(f"s_waitcnt vmcnt({G*(issued-(t+1))}) lgkmcnt(0)")
                k.e("s_barrier")
            else:
                k.e("s_waitcnt lgkmcnt(0)")
            if not last_u:
                fill += reads(t, u + 1)
            elif t + 1 < T:
                fill += reads(t + 1, 0)
            if last_u and t + NS < T:
                fill += dma_stage(t + NS)
            mf = []
            s_ = (t * NU + u) % 2
            for kl in range(U):
                for nt in range(NT):
                    for mt in range(MT):
                        a = acc(mt, nt)
                        csrc = "0" if (t == 0 and u == 0 and kl == 0) else f"a[{a}:{a+15}]"
                        wr_, xr_ = wfrag(s_, kl, nt), xfrag(s_, kl, mt)
                        mf.append(f"v_mfma_f32_32x32x16_bf16 a[{a}:{a+15}], v[{wr_}:{wr_+3}], v[{xr_}:{xr_+3}], {csrc}")
            for s2_ in interleave(mf, fill):
                k.e(s2_)

    k.e("s_nop 15")
    E = VE
    t0, t1, t2, t3 = VT, VT + 1, VT + 2, VT + 3
    k.e(f"v_and_b32 v{t0}, 31, v0")
    k.e(f"v_lshrrev_b32 v{t1}, 5, v0")
    k.e(f"s_mul_i32 s36, s28, {BM}")
    k.e(f"s_mul_i32 s31, s44, {MT*32}")
    k.e("s_add_u32 s36, s36, s31")
    k.e(f"v_add_u32 v{t0}, s36, v{t0}")
    if kind == 'qkv':
        k.e(f"v_lshlrev_b32 v{t2}, 6, v{t0}")
        k.e(f"v_lshl_add_u32 v{t2}, v{t1}, 4, v{t2}")
        for nt in range(NT):
            k.e(f"s_mul_i32 s37, s29, {NT}")
            k.e(f"s_add_u32 s37, s37, {nt}")
            k.e("s_cmp_lt_u32 s37, 32")
            k.e(f"s_cselect_b32 s{46+nt}, {QSCALE:#x}, 1.0")
            k.e(f"s_lshl_b32 s{50+nt}, s37, 17")
        for mt in range(MT):
            for nt in range(NT):
                a = acc(mt, nt)
                for r in range(16):
                    k.e(f"v_accvgpr_read_b32 v{E+r}, a{a+r}")
                for r in range(16):
                    k.e(f"v_mul_f32 v{E+r}, s{46+nt}, v{E+r}")
                P = E + 16 + 8 * ((mt * NT + nt) % 2)
                for g in range(4):
                    k.e(f"v_cvt_pk_bf16_f32 v{P+2*g}, v{E+4*g}, v{E+4*g+1}")
                    k.e(f"v_cvt_pk_bf16_f32 v{P+2*g+1}, v{E+4*g+2}, v{E+4*g+3}")
                k.e("s_nop 1")
                for gp in range(2):
                    k.e(f"v_permlane32_swap_b32 v{P+4*gp}, v{P+4*gp+2}")
                    k.e(f"v_permlane32_swap_b32 v{P+4*gp+1}, v{P+4*gp+3}")
                for gp in range(2):
                    k.e(f"buffer_store_dwordx4 v[{P+4*gp}:{P+4*gp+3}], v{t2}, s[16:19], s{50+nt} offen offset:{mt*2048 + gp*32}")
    elif kind == 'gu':
        k.e(f"s_mov_b32 s37, {F*2}")
        k.e(f"v_mul_lo_u32 v{t2}, v{t0}, s37")
        k.e(f"v_lshl_add_u32 v{t2}, v{t1}, 4, v{t2}")
        k.e(f"s_mul_i32 s37, s29, 224")
        k.e(f"v_add_u32 v{t2}, s37, v{t2}")
        k.e(f"s_mov_b32 s46, {32*F*2}")
        for mt in range(MT):
            for nt in range(NT):
                a = acc(mt, nt)
                for r in range(16):
                    k.e(f"v_accvgpr_read_b32 v{E+r}, a{a+r}")
                for r in range(0, 16, 2):
                    k.e(f"v_cvt_pk_bf16_f32 v{E+16+r//2}, v{E+r}, v{E+r+1}")
                for r in range(0, 16, 2):
                    k.e(f"v_lshlrev_b32 v{E+r}, 16, v{E+16+r//2}")
                    k.e(f"v_and_b32 v{E+r+1}, 0xffff0000, v{E+16+r//2}")
                for r in range(8):
                    k.e(f"v_mul_f32 v{E+r}, v{E+r}, v{E+8+r}")
                P = E + 24 + 4 * ((mt * NT + nt) % 4)
                for g in range(2):
                    k.e(f"v_cvt_pk_bf16_f32 v{P+2*g}, v{E+4*g}, v{E+4*g+1}")
                    k.e(f"v_cvt_pk_bf16_f32 v{P+2*g+1}, v{E+4*g+2}, v{E+4*g+3}")
                k.e("s_nop 1")
                k.e(f"v_permlane32_swap_b32 v{P}, v{P+2}")
                k.e(f"v_permlane32_swap_b32 v{P+1}, v{P+3}")
                so = "s46" if mt else "0"
                k.e(f"buffer_store_dwordx4 v[{P}:{P+3}], v{t2}, s[16:19], {so} offen offset:{nt*32}")
    else:
        assert NT == 1
        k.e(f"s_mul_i32 s37, s29, {NBLK_COLS}")
        k.e("s_lshl_b32 s31, s45, 5")
        k.e("s_add_u32 s37, s37, s31")
        k.e(f"v_lshlrev_b32 v{t2}, 11, v{t0}")
        k.e(f"v_lshl_add_u32 v{t2}, v{t1}, 4, v{t2}")
        k.e("s_lshl_b32 s31, s37, 1")
        k.e(f"v_add_u32 v{t2}, s31, v{t2}")
        k.e("s_lshl_b32 s31, s37, 2")
        k.e(f"v_lshlrev_b32 v{t3}, 5, v{t1}")
        k.e(f"v_add_u32 v{t3}, s31, v{t3}")
        k.e(f"s_mov_b32 s46, {32*2048}")
        GV = E + 32
        RV = E + 48
        for gp in range(2):
            k.e(f"buffer_load_dwordx4 v[{GV+8*gp}:{GV+8*gp+3}], v{t3}, s[24:27], 0 offen offset:{gp*64}")
            k.e(f"buffer_load_dwordx4 v[{GV+8*gp+4}:{GV+8*gp+7}], v{t3}, s[24:27], 0 offen offset:{gp*64+16}")
        for mt in range(MT):
            for gp in range(2):
                so = "s46" if mt else "0"
                r = RV + 8 * mt + 4 * gp
                k.e(f"buffer_load_dwordx4 v[{r}:{r+3}], v{t2}, s[20:23], {so} offen offset:{gp*32}")
        for mt in range(MT):
            a = acc(mt, 0)
            for r in range(16):
                k.e(f"v_accvgpr_read_b32 v{E+r}, a{a+r}")
            P = E + 16
            for g in range(4):
                k.e(f"v_cvt_pk_bf16_f32 v{P+2*g}, v{E+4*g}, v{E+4*g+1}")
                k.e(f"v_cvt_pk_bf16_f32 v{P+2*g+1}, v{E+4*g+2}, v{E+4*g+3}")
            k.e("s_nop 1")
            for gp in range(2):
                k.e(f"v_permlane32_swap_b32 v{P+4*gp}, v{P+4*gp+2}")
                k.e(f"v_permlane32_swap_b32 v{P+4*gp+1}, v{P+4*gp+3}")
            if mt == 0:
                k.e("s_waitcnt vmcnt(0)")
            for gp in range(2):
                for j in range(4):
                    p = P + 4 * gp + j
                    g0, g1 = GV + 8 * gp + 2 * j, GV + 8 * gp + 2 * j + 1
                    rr = RV + 8 * mt + 4 * gp + j
                    a0, a1, b0, b1 = E, E + 1, E + 2, E + 3
                    k.e(f"v_lshlrev_b32 v{a0}, 16, v{p}")
                    k.e(f"v_and_b32 v{a1}, 0xffff0000, v{p}")
                    k.e(f"v_mul_f32 v{a0}, v{g0}, v{a0}")
                    k.e(f"v_mul_f32 v{a1}, v{g1}, v{a1}")
                    k.e(f"v_cvt_pk_bf16_f32 v{p}, v{a0}, v{a1}")
                    k.e(f"v_lshlrev_b32 v{a0}, 16, v{p}")
                    k.e(f"v_and_b32 v{a1}, 0xffff0000, v{p}")
                    k.e(f"v_lshlrev_b32 v{b0}, 16, v{rr}")
                    k.e(f"v_and_b32 v{b1}, 0xffff0000, v{rr}")
                    k.e(f"v_add_f32 v{a0}, v{a0}, v{b0}")
                    k.e(f"v_add_f32 v{a1}, v{a1}, v{b1}")
                    k.e(f"v_cvt_pk_bf16_f32 v{rr}, v{a0}, v{a1}")
                so = "s46" if mt else "0"
                r = RV + 8 * mt + 4 * gp
                k.e(f"buffer_store_dwordx4 v[{r}:{r+3}], v{t2}, s[16:19], {so} offen offset:{gp*32}")
    k.lab(f"{name}_end")
    return k, dict(grid=NWG, block=256, lds=LDS, vgpr=NV, agpr=NA)
```

```python
from common import *


def wave_sum(k, v, tmp, sbase):
    k.e("s_nop 1")
    k.e(f"v_add_f32_dpp v{tmp}, v{v}, v{v} quad_perm:[1,0,3,2] row_mask:0xf bank_mask:0xf")
    k.e("s_nop 1")
    k.e(f"v_add_f32_dpp v{v}, v{tmp}, v{tmp} quad_perm:[2,3,0,1] row_mask:0xf bank_mask:0xf")
    k.e("s_nop 1")
    k.e(f"v_add_f32_dpp v{tmp}, v{v}, v{v} row_half_mirror row_mask:0xf bank_mask:0xf")
    k.e("s_nop 1")
    k.e(f"v_add_f32_dpp v{v}, v{tmp}, v{tmp} row_mirror row_mask:0xf bank_mask:0xf")
    k.e("s_nop 1")
    k.e(f"v_readlane_b32 s{sbase}, v{v}, 0")
    k.e(f"v_readlane_b32 s{sbase+1}, v{v}, 16")
    k.e(f"v_readlane_b32 s{sbase+2}, v{v}, 32")
    k.e(f"v_readlane_b32 s{sbase+3}, v{v}, 48")
    k.e("s_nop 1")
    k.e(f"v_mov_b32 v{v}, s{sbase}")
    k.e(f"v_add_f32 v{v}, s{sbase+1}, v{v}")
    k.e(f"v_add_f32 v{v}, s{sbase+2}, v{v}")
    k.e(f"v_add_f32 v{v}, s{sbase+3}, v{v}")


def bf16r(k, v, tmp):
    k.e(f"v_cvt_pk_bf16_f32 v{tmp}, v{v}, v{v}")
    k.e(f"v_lshlrev_b32 v{v}, 16, v{tmp}")


def gen_mod():
    k = Kern("mod_kernel")
    NWG = 192
    k.e(f"s_cmp_ge_u32 s2, {NWG}")
    k.e("s_cbranch_scc1 mod_kernel_end")
    k.e(f"s_load_dwordx2 s[4:5], s[0:1], {KA_C}")
    k.e(f"s_load_dwordx2 s[6:7], s[0:1], {KA_WMOD}")
    k.e(f"s_load_dwordx2 s[8:9], s[0:1], {KA_WS}")
    k.e("v_and_b32 v1, 3, v0")
    k.e("v_lshrrev_b32 v2, 2, v0")
    k.e("s_waitcnt lgkmcnt(0)")
    k.srd(12, 4, 5, 2048)
    k.srd(16, 6, 7, 1024 * 6144 * 2)
    k.srd_off(20, 8, 9, WS_MOD, 6144 * 4)
    k.e("v_lshlrev_b32 v3, 1, v2")
    k.e("v_mul_u32_u24 v4, 12288, v2")
    k.e("v_lshlrev_b32 v5, 4, v1")
    k.e("s_lshl_b32 s3, s2, 6")
    k.e("v_add3_u32 v4, v4, v5, s3")
    for i in range(16):
        k.e(f"s_mov_b32 s{24+i}, {i*64*12288}")
    CV = 16
    WV = 32
    AC = 96
    for i in range(16):
        k.e(f"buffer_load_ushort v{CV+i}, v3, s[12:15], 0 offen offset:{i*128}")
    for i in range(16):
        k.e(f"buffer_load_dwordx4 v[{WV+4*i}:{WV+4*i+3}], v4, s[16:19], s{24+i} offen")
    for j in range(8):
        k.e(f"v_mov_b32 v{AC+j}, 0")
    k.e("s_waitcnt vmcnt(16)")
    for i in range(16):
        c = CV + i
        k.e(f"v_lshlrev_b32 v{c}, 16, v{c}")
        k.e(f"v_mul_f32 v6, 0xbfb8aa3b, v{c}")
        k.e("v_exp_f32 v6, v6")
        k.e("s_nop 0")
        k.e("v_add_f32 v6, 1.0, v6")
        k.e("v_rcp_f32 v6, v6")
        k.e("s_nop 0")
        k.e(f"v_mul_f32 v{c}, v{c}, v6")
        bf16r(k, c, 6)
    for i in range(16):
        k.e(f"s_waitcnt vmcnt({15-i})")
        for j in range(4):
            w = WV + 4 * i + j
            k.e(f"v_lshlrev_b32 v6, 16, v{w}")
            k.e(f"v_and_b32 v7, 0xffff0000, v{w}")
            k.e(f"v_fmac_f32 v{AC+2*j}, v{CV+i}, v6")
            k.e(f"v_fmac_f32 v{AC+2*j+1}, v{CV+i}, v7")
    k.e("v_lshlrev_b32 v6, 5, v0")
    k.e(f"ds_write_b128 v6, v[{AC}:{AC+3}]")
    k.e(f"ds_write_b128 v6, v[{AC+4}:{AC+7}] offset:16")
    k.e("s_waitcnt lgkmcnt(0)")
    k.e("s_barrier")
    k.e("v_and_b32 v7, 31, v0")
    k.e("v_lshrrev_b32 v8, 5, v0")
    k.e("v_lshlrev_b32 v9, 10, v8")
    k.e("v_lshl_add_u32 v9, v7, 2, v9")
    for i in range(8):
        k.e(f"ds_read_b32 v{CV+i}, v9 offset:{i*128}")
    k.e("s_waitcnt lgkmcnt(0)")
    for i in range(1, 8):
        k.e(f"v_add_f32 v{CV}, v{CV}, v{CV+i}")
    k.e("s_barrier")
    k.e("v_lshlrev_b32 v9, 2, v0")
    k.e(f"ds_write_b32 v9, v{CV}")
    k.e("s_waitcnt lgkmcnt(0)")
    k.e("s_barrier")
    k.e("v_lshlrev_b32 v9, 2, v7")
    for i in range(8):
        k.e(f"ds_read_b32 v{CV+i}, v9 offset:{i*128}")
    k.e("s_waitcnt lgkmcnt(0)")
    for i in range(1, 8):
        k.e(f"v_add_f32 v{CV}, v{CV}, v{CV+i}")
    bf16r(k, CV, 6)
    k.e("v_cmp_gt_u32 vcc, 32, v0")
    k.e("s_and_saveexec_b64 s[40:41], vcc")
    k.e("s_cbranch_execz mod_kernel_end")
    k.e("s_lshl_b32 s3, s2, 7")
    k.e("v_lshl_add_u32 v9, v7, 2, s3")
    k.e(f"buffer_store_dword v{CV}, v9, s[20:23], 0 offen")
    k.lab("mod_kernel_end")
    return k, dict(grid=NWG, block=256, lds=8192, vgpr=104)


def gen_ln(name, src_is_ws, src_off, dst_off, shift_idx):
    k = Kern(name)
    NWG = 512
    k.e(f"s_cmp_ge_u32 s2, {NWG}")
    k.e(f"s_cbranch_scc1 {name}_end")
    k.e(f"s_load_dwordx2 s[4:5], s[0:1], {KA_X}")
    k.e(f"s_load_dwordx2 s[8:9], s[0:1], {KA_WS}")
    k.e("v_and_b32 v1, 63, v0")
    k.e("v_lshrrev_b32 v2, 6, v0")
    k.e("s_waitcnt lgkmcnt(0)")
    if src_is_ws:
        k.srd_off(12, 8, 9, src_off, S * D * 2)
    else:
        k.srd(12, 4, 5, S * D * 2)
    k.srd_off(16, 8, 9, dst_off, S * D * 2)
    k.srd_off(20, 8, 9, WS_MOD + shift_idx * 4096, 8192)
    k.e("s_lshl_b32 s3, s2, 13")
    k.e("v_lshlrev_b32 v3, 11, v2")
    k.e("v_lshl_add_u32 v3, v1, 4, v3")
    k.e("v_add_u32 v3, s3, v3")
    k.e("v_lshlrev_b32 v4, 5, v1")
    k.e("s_mov_b32 s24, 4096")
    X = 8
    SH = 16
    SC = 32
    XF = 48
    k.e(f"buffer_load_dwordx4 v[{X}:{X+3}], v3, s[12:15], 0 offen")
    k.e(f"buffer_load_dwordx4 v[{X+4}:{X+7}], v3, s[12:15], 0 offen offset:1024")
    for i, off in enumerate([0, 16, 2048, 2064]):
        k.e(f"buffer_load_dwordx4 v[{SH+4*i}:{SH+4*i+3}], v4, s[20:23], 0 offen offset:{off}")
    for i, off in enumerate([0, 16, 2048, 2064]):
        k.e(f"buffer_load_dwordx4 v[{SC+4*i}:{SC+4*i+3}], v4, s[20:23], s24 offen offset:{off}")
    k.e("s_waitcnt vmcnt(8)")
    for i in range(8):
        k.e(f"v_lshlrev_b32 v{XF+2*i}, 16, v{X+i}")
        k.e(f"v_and_b32 v{XF+2*i+1}, 0xffff0000, v{X+i}")
    k.e(f"v_add_f32 v5, v{XF}, v{XF+1}")
    for i in range(2, 16):
        k.e(f"v_add_f32 v5, v5, v{XF+i}")
    wave_sum(k, 5, 6, 28)
    k.e("v_mul_f32 v5, 0x3a800000, v5")
    k.e("v_mov_b32 v7, 0")
    for i in range(16):
        k.e(f"v_sub_f32 v6, v{XF+i}, v5")
        k.e("v_fmac_f32 v7, v6, v6")
    wave_sum(k, 7, 6, 28)
    k.e("v_mul_f32 v7, 0x3a800000, v7")
    bf16r(k, 5, 6)
    bf16r(k, 7, 6)
    k.e("v_add_f32 v7, 0x3727c5ac, v7")
    bf16r(k, 7, 6)
    k.e("v_sqrt_f32 v7, v7")
    k.e("s_nop 0")
    bf16r(k, 7, 6)
    k.e("v_rcp_f32 v7, v7")
    k.e("s_waitcnt vmcnt(0)")
    for i in range(0, 16, 2):
        k.e(f"v_add_f32 v{SC+i}, 1.0, v{SC+i}")
        k.e(f"v_add_f32 v{SC+i+1}, 1.0, v{SC+i+1}")
        k.e(f"v_cvt_pk_bf16_f32 v6, v{SC+i}, v{SC+i+1}")
        k.e(f"v_lshlrev_b32 v{SC+i}, 16, v6")
        k.e(f"v_and_b32 v{SC+i+1}, 0xffff0000, v6")
    for i in range(0, 16, 2):
        a, b = XF + i, XF + i + 1
        k.e(f"v_sub_f32 v{a}, v{a}, v5")
        k.e(f"v_sub_f32 v{b}, v{b}, v5")
        k.e(f"v_cvt_pk_bf16_f32 v6, v{a}, v{b}")
        k.e(f"v_lshlrev_b32 v{a}, 16, v6")
        k.e(f"v_and_b32 v{b}, 0xffff0000, v6")
        k.e(f"v_mul_f32 v{a}, v{a}, v7")
        k.e(f"v_mul_f32 v{b}, v{b}, v7")
        k.e(f"v_cvt_pk_bf16_f32 v6, v{a}, v{b}")
        k.e(f"v_lshlrev_b32 v{a}, 16, v6")
        k.e(f"v_and_b32 v{b}, 0xffff0000, v6")
        k.e(f"v_mul_f32 v{a}, v{a}, v{SC+i}")
        k.e(f"v_mul_f32 v{b}, v{b}, v{SC+i+1}")
        k.e(f"v_cvt_pk_bf16_f32 v6, v{a}, v{b}")
        k.e(f"v_lshlrev_b32 v{a}, 16, v6")
        k.e(f"v_and_b32 v{b}, 0xffff0000, v6")
        k.e(f"v_add_f32 v{a}, v{a}, v{SH+i}")
        k.e(f"v_add_f32 v{b}, v{b}, v{SH+i+1}")
        k.e(f"v_cvt_pk_bf16_f32 v{X+i//2}, v{a}, v{b}")
    k.e(f"buffer_store_dwordx4 v[{X}:{X+3}], v3, s[16:19], 0 offen")
    k.e(f"buffer_store_dwordx4 v[{X+4}:{X+7}], v3, s[16:19], 0 offen offset:1024")
    k.lab(f"{name}_end")
    return k, dict(grid=NWG, block=256, lds=0, vgpr=64)
```

```python
import sys, os
sys.path.insert(0, os.path.dirname(__file__))
from common import *
from k_small import gen_mod, gen_ln
from k_gemm import gen_gemm
from k_attn import gen_attn

HEADER = open('adaLN_cond__mha_block__glu_gated_bilinear__prompt.s.ref').read().split('; Override launch')[0]

def build():
    ks = []
    ks.append(gen_mod())
    ks.append(gen_ln("ln1_kernel", False, 0, WS_H1, 0))
    ks.append(gen_gemm("qkv_kernel", 'qkv', 4, 1, 2, 3, 1024, 3, 1, WS_H1, 3072))
    ks.append(gen_attn())
    ks.append(gen_gemm("wo_kernel", 'wo', 2, 2, 2, 1, 1024, 4, 4, WS_O, 1024))
    ks.append(gen_ln("ln2_kernel", True, WS_X1, WS_H2, 3))
    ks.append(gen_gemm("gu_kernel", 'gu', 4, 1, 2, 7, 1024, 2, 1, WS_H2, 3584))
    ks.append(gen_gemm("down_kernel", 'down', 2, 2, 2, 1, 3584, 4, 4, WS_HH, 1024))
    out = [HEADER.rstrip('\n')]
    for k, p in ks:
        out.append(f"; @launch kernel={k.name} grid=({p['grid']},1,1) block=({p['block']},1,1) lds={p['lds']}")
    out.append('.amdgcn_target "amdgcn-amd-amdhsa--gfx950"')
    out.append(".text")
    kds = []
    for k, p in ks:
        t, kd = k.text(p['vgpr'], p.get('agpr', 0))
        out.append(t)
        kds.append(kd)
    out.append('.section .rodata,"a"')
    for kd in kds:
        out.append(".p2align 6")
        out.append(kd)
    return "\n".join(out) + "\n"

if __name__ == "__main__":
    dst = sys.argv[1] if len(sys.argv) > 1 else 'adaLN_cond__mha_block__glu_gated_bilinear__prompt.s'
    open(dst, 'w').write(build())
    print("wrote", dst, os.path.getsize(dst))
```

```python
KA_X, KA_WQKV, KA_WO, KA_BX, KA_WG, KA_WU, KA_WD, KA_C, KA_WMOD, KA_OUT, KA_DBG, KA_WS = [8*i for i in range(12)]

MB = 1 << 20
WS_MOD = 0
WS_H1 = 1 * MB
WS_Q = 5 * MB
WS_O = 17 * MB
WS_X1 = 21 * MB
WS_H2 = 25 * MB
WS_HH = 29 * MB

S = 2048
D = 1024
F = 3584


import os
STAMP = os.environ.get('STAMP') is not None

class Kern:
    def __init__(self, name):
        self.name = name
        self.L = []
        self.nlab = 0
        self.nstamp = 0

    def stamp(self):
        if not STAMP:
            return
        i = self.nstamp
        self.nstamp += 1
        op = "s_memrealtime" if os.environ.get('REALT') else "s_memtime"
        self.e(f"{op} s[{60+2*i}:{61+2*i}]")

    def stamp_flush(self, wave_sgpr, vtmp, wg=0):
        if not STAMP:
            return
        lab = self.newlab("noflush")
        self.e(f"s_cmp_lg_u32 s2, {wg}")
        self.e(f"s_cbranch_scc1 {lab}")
        self.e(f"s_cmp_lg_u32 s{wave_sgpr}, 0")
        self.e(f"s_cbranch_scc1 {lab}")
        self.e(f"s_load_dwordx2 s[90:91], s[0:1], {KA_DBG}")
        self.e("s_waitcnt lgkmcnt(0)")
        self.srd(92, 90, 91, 256)
        for i in range(self.nstamp):
            self.e(f"v_mov_b32 v{vtmp}, s{60+2*i}")
            self.e(f"v_mov_b32 v{vtmp+1}, {4*i}")
            self.e(f"buffer_store_dword v{vtmp}, v{vtmp+1}, s[92:95], 0 offen")
            self.e("s_nop 3")
        self.lab(lab)

    def e(self, s):
        self.L.append("    " + s)

    def c(self, s):
        self.L.append("    ; " + s)

    def lab(self, l):
        self.L.append(l + ":")

    def newlab(self, base="L"):
        self.nlab += 1
        return f"{self.name}_{base}{self.nlab}"

    def srd(self, sreg, lo, hi, nbytes):
        self.e(f"s_mov_b32 s{sreg}, s{lo}")
        self.e(f"s_and_b32 s{sreg+1}, s{hi}, 0xffff")
        self.e(f"s_mov_b32 s{sreg+2}, {nbytes}")
        self.e(f"s_mov_b32 s{sreg+3}, 0x00020000")

    def srd_off(self, sreg, lo, hi, off, nbytes):
        self.e(f"s_add_u32 s{sreg}, s{lo}, {off}")
        self.e(f"s_addc_u32 s{sreg+1}, s{hi}, 0")
        self.e(f"s_and_b32 s{sreg+1}, s{sreg+1}, 0xffff")
        self.e(f"s_mov_b32 s{sreg+2}, {nbytes}")
        self.e(f"s_mov_b32 s{sreg+3}, 0x00020000")

    def text(self, vgpr, agpr=0, sgpr=96):
        acc_off = (vgpr + 3) // 4 * 4
        nfv = acc_off + agpr if agpr else vgpr
        out = []
        out.append(f".globl {self.name}")
        out.append(".p2align 8")
        out.append(f".type {self.name},@function")
        out.append(f"{self.name}:")
        out += self.L
        out.append("    s_endpgm")
        kd = []
        kd.append(f".amdhsa_kernel {self.name}")
        kd.append(f"  .amdhsa_next_free_vgpr {nfv}")
        kd.append(f"  .amdhsa_next_free_sgpr {sgpr}")
        kd.append(f"  .amdhsa_accum_offset {acc_off}")
        kd.append("  .amdhsa_group_segment_fixed_size 0")
        kd.append("  .amdhsa_kernarg_size 96")
        kd.append("  .amdhsa_user_sgpr_count 2")
        kd.append("  .amdhsa_user_sgpr_kernarg_segment_ptr 1")
        kd.append("  .amdhsa_system_sgpr_workgroup_id_x 1")
        kd.append("  .amdhsa_float_denorm_mode_32 3")
        kd.append("  .amdhsa_float_denorm_mode_16_64 3")
        kd.append(".end_amdhsa_kernel")
        return "\n".join(out), "\n".join(kd)


def interleave(main, fill, start=0, per=None):
    out = []
    n = len(main)
    nf = len(fill)
    if n == 0:
        for f in fill:
            out += f if isinstance(f, list) else [f]
        return out
    fi = 0
    slots = max(1, n - start)
    for i, m in enumerate(main):
        out.append(m)
        if i < start:
            continue
        j = i - start + 1
        if per is None:
            tgt = (nf * j + slots - 1) // slots
        else:
            tgt = min(nf, per * j)
        while fi < tgt:
            f = fill[fi]
            out += f if isinstance(f, list) else [f]
            fi += 1
    while fi < nf:
        f = fill[fi]
        out += f if isinstance(f, list) else [f]
        fi += 1
    return out
```

```python
from common import *
import os

def gen_attn():
    name = "attn_kernel"
    k = Kern(name)
    NWG = 256
    NS = 4
    SK = int(os.environ.get('ATT_SK', '128'))
    STAGE = 2 * SK * 64
    VOFFL = SK * 64
    NST = S // SK
    TPS = SK // 32
    LT = NS * TPS
    CPW = SK // 128
    FLAG = NS * STAGE
    THR = os.environ.get("ATT_THR", "0x42700000")
    FORCE_SAFE = os.environ.get("ATT_FORCE_SAFE") is not None

    v = 1
    def alloc(n, align=1):
        nonlocal v
        v = (v + align - 1) // align * align
        r = v
        v += n
        return r
    VT = alloc(7)
    VD = alloc(2)
    VKA = alloc(4)
    VVA = alloc(2)
    VQA = alloc(1)
    VQ = alloc(8, 4)
    VONE = alloc(4, 4)
    VS = [alloc(16, 4), alloc(16, 4)]
    VC = alloc(16, 4)
    VO = alloc(16, 4)
    VL = alloc(16, 4)
    VK = [alloc(8, 4), alloc(8, 4)]
    VV = [alloc(8, 4), alloc(8, 4)]
    VP = [alloc(8, 4), alloc(8, 4)]
    VM = alloc(4)
    VLC = alloc(1)
    NV = v
    t0, t1, t2, t3 = VT, VT + 1, VT + 2, VT + 3

    k.e(f"s_cmp_ge_u32 s2, {NWG}")
    k.e(f"s_cbranch_scc1 {name}_end")
    k.stamp()
    k.e(f"s_load_dwordx2 s[4:5], s[0:1], {KA_WS}")
    k.e(f"v_lshrrev_b32 v{t0}, 6, v0")
    k.e("v_and_b32 v0, 63, v0")
    k.e("s_nop 0")
    k.e(f"v_readfirstlane_b32 s30, v{t0}")
    k.e("s_and_b32 s28, s2, 31")
    k.e("s_lshr_b32 s29, s2, 5")
    k.e(f"v_lshrrev_b32 v{t0}, 2, v0")
    k.e(f"v_and_b32 v{t1}, 3, v0")
    k.e(f"v_lshrrev_b32 v{t2}, 4, v0")
    k.e(f"v_xor_b32 v{t1}, v{t1}, v{t2}")
    k.e(f"v_lshlrev_b32 v{t0}, 6, v{t0}")
    k.e(f"v_lshl_add_u32 v{t0}, v{t1}, 4, v{t0}")
    k.e(f"s_mul_i32 s40, s30, {1024*CPW}")
    k.e(f"v_add_u32 v{VD}, s40, v{t0}")
    k.e(f"v_lshlrev_b32 v{t0}, 4, v0")
    k.e(f"v_add_u32 v{VD+1}, s40, v{t0}")
    k.e(f"v_and_b32 v{t0}, 31, v0")
    k.e(f"v_lshrrev_b32 v{t1}, 5, v0")
    k.e("s_lshl_b32 s31, s29, 8")
    k.e("s_lshl_b32 s34, s30, 5")
    k.e("s_add_u32 s34, s34, s31")
    k.e(f"v_add_u32 v{t2}, s34, v{t0}")
    k.e(f"v_lshlrev_b32 v{VQA}, 6, v{t2}")
    k.e(f"v_lshl_add_u32 v{VQA}, v{t1}, 4, v{VQA}")
    k.e("s_waitcnt lgkmcnt(0)")
    k.e("s_lshl_b32 s31, s28, 17")
    k.e(f"s_add_u32 s32, s4, s31")
    k.e("s_addc_u32 s33, s5, 0")
    k.srd_off(8, 32, 33, WS_Q, 131072)
    k.srd_off(12, 32, 33, WS_Q + 4 * MB, 131072)
    k.srd_off(16, 32, 33, WS_Q + 8 * MB, 131072)
    k.srd_off(20, 4, 5, WS_O, S * D * 2)

    def dma_stage(b):
        res = []
        for c in range(CPW):
            res.append([f"s_add_u32 m0, s40, {b*STAGE}",
                        "s_nop 0",
                        f"buffer_load_dwordx4 v{VD}, s[12:15], s42 offen offset:{c*1024} lds"])
            res.append([f"s_add_u32 m0, s40, {b*STAGE + VOFFL}",
                        "s_nop 0",
                        f"buffer_load_dwordx4 v{VD+1}, s[16:19], s42 offen offset:{c*1024} lds"])
        res.append([f"s_add_u32 s42, s42, {SK*64}"])
        return res

    def start_loads():
        k.e("s_mov_b32 s42, 0")
        k.e(f"buffer_load_dwordx4 v[{VQ}:{VQ+3}], v{VQA}, s[8:11], 0 offen")
        k.e(f"buffer_load_dwordx4 v[{VQ+4}:{VQ+7}], v{VQA}, s[8:11], 0 offen offset:32")
        for s_ in range(2):
            for grp in dma_stage(s_):
                for x in grp:
                    k.e(x)
    start_loads()
    k.e(f"v_lshlrev_b32 v{VT+4}, 11, v{t2}")
    k.e(f"v_lshl_add_u32 v{VT+4}, v{t1}, 4, v{VT+4}")
    k.e("s_lshl_b32 s31, s28, 6")
    k.e(f"v_add_u32 v{VT+4}, s31, v{VT+4}")
    k.e(f"v_bfe_u32 v{t2}, v{t0}, 2, 2")
    k.e(f"v_xor_b32 v{t2}, v{t2}, v{t1}")
    k.e(f"v_lshlrev_b32 v{t3}, 6, v{t0}")
    k.e(f"v_lshl_add_u32 v{VKA}, v{t2}, 4, v{t3}")
    k.e(f"v_xor_b32 v{VKA+1}, 32, v{VKA}")
    k.e(f"v_add_u32 v{VKA+2}, 0x10000, v{VKA}")
    k.e(f"v_add_u32 v{VKA+3}, 0x10000, v{VKA+1}")
    k.e(f"v_and_b32 v{t0}, 15, v0")
    k.e(f"v_bfe_u32 v{t2}, v0, 4, 1")
    k.e(f"v_lshrrev_b32 v{t3}, 2, v{t0}")
    k.e(f"v_lshl_add_u32 v{t3}, v{t1}, 2, v{t3}")
    k.e(f"v_lshlrev_b32 v{t3}, 6, v{t3}")
    k.e(f"v_lshl_add_u32 v{t3}, v{t2}, 5, v{t3}")
    k.e(f"v_and_b32 v{t0}, 3, v{t0}")
    k.e(f"v_lshl_add_u32 v{t3}, v{t0}, 3, v{t3}")
    k.e(f"v_add_u32 v{VVA}, {VOFFL}, v{t3}")
    k.e(f"v_add_u32 v{VVA+1}, 0x10000, v{VVA}")
    for i in range(4):
        k.e(f"v_mov_b32 v{VONE+i}, 0x3f803f80")

    def kreads(t):
        b = (t // TPS) % NS
        off = b * STAGE + (t % TPS) * 2048
        hi = 2 if off >= 65536 else 0
        off -= 65536 * (hi // 2)
        r = VK[t % 2]
        return [f"ds_read_b128 v[{r}:{r+3}], v{VKA+hi} offset:{off}",
                f"ds_read_b128 v[{r+4}:{r+7}], v{VKA+1+hi} offset:{off}"]

    def vreads(t):
        b = (t // TPS) % NS
        off = b * STAGE + (t % TPS) * 2048
        r = VV[t % 2]
        out = []
        for s_ in range(2):
            for rd in range(2):
                o = off + (16 * s_ + 8 * rd) * 64
                hi = 1 if o >= 65536 else 0
                o2 = o - 65536 * hi
                out.append(f"ds_read_b64_tr_b16 v[{r+4*s_+2*rd}:{r+4*s_+2*rd+1}], v{VVA+hi} offset:{o2}")
        return out

    def smfma(t, first=False):
        r = VK[t % 2]
        s_ = VS[t % 2]
        c = "0" if first else f"v[{VC}:{VC+15}]"
        return [f"v_mfma_f32_32x32x16_bf16 v[{s_}:{s_+15}], v[{r}:{r+3}], v[{VQ}:{VQ+3}], {c}",
                f"v_mfma_f32_32x32x16_bf16 v[{s_}:{s_+15}], v[{r+4}:{r+7}], v[{VQ+4}:{VQ+7}], v[{s_}:{s_+15}]"]

    def pv(t):
        vr = VV[t % 2]
        p = VP[t % 2]
        return [f"v_mfma_f32_32x32x16_bf16 v[{VO}:{VO+15}], v[{vr}:{vr+3}], v[{p}:{p+3}], v[{VO}:{VO+15}]",
                f"v_mfma_f32_32x32x16_bf16 v[{VL}:{VL+15}], v[{VONE}:{VONE+3}], v[{p}:{p+3}], v[{VL}:{VL+15}]",
                f"v_mfma_f32_32x32x16_bf16 v[{VO}:{VO+15}], v[{vr+4}:{vr+7}], v[{p+4}:{p+7}], v[{VO}:{VO+15}]",
                f"v_mfma_f32_32x32x16_bf16 v[{VL}:{VL+15}], v[{VONE}:{VONE+3}], v[{p+4}:{p+7}], v[{VL}:{VL+15}]"]

    def barrier_for_stage(s_):
        k.e(f"s_waitcnt vmcnt({2*CPW}) lgkmcnt(0)")
        k.e("s_barrier")
        for grp in dma_stage((s_ + 2) % NS):
            for x in grp:
                k.e(x)

    def maxtree(sc):
        mx = [f"v_max3_f32 v{VM}, v{sc}, v{sc+1}, v{sc+2}"]
        for r in range(3, 15, 2):
            mx.append(f"v_max3_f32 v{VM}, v{VM}, v{sc+r}, v{sc+r+1}")
        mx.append(f"v_max_f32 v{VM}, v{VM}, v{sc+15}")
        return mx

    rescue = []
    frescue = []

    def body(safe):
        tag = "s" if safe else "f"
        for i in range(16):
            k.e(f"v_mov_b32 v{VO+i}, 0")
            k.e(f"v_mov_b32 v{VL+i}, 0")
        for i in range(8):
            k.e(f"v_mov_b32 v{VP[1]+i}, 0")
            k.e(f"v_mov_b32 v{VV[1]+i}, 0")
        k.e(f"v_mov_b32 v{VLC}, 0")
        barrier_for_stage(0)
        for x in kreads(0) + kreads(1):
            k.e(x)
        k.e("s_waitcnt lgkmcnt(2)")
        for x in smfma(0, first=True):
            k.e(x)
        sc = VS[0]
        k.e("s_nop 15")
        for x in maxtree(sc):
            k.e(x)
        k.e(f"v_mov_b32 v{VM+1}, v{VM}")
        k.e("s_nop 1")
        k.e(f"v_permlane32_swap_b32 v{VM}, v{VM+1}")
        k.e(f"v_max_f32 v{VM}, v{VM}, v{VM+1}")
        for r in range(16):
            k.e(f"v_sub_f32 v{sc+r}, v{sc+r}, v{VM}")
            k.e(f"v_sub_f32 v{VC+r}, 0, v{VM}")
        for x in vreads(0):
            k.e(x)
        if not safe:
            k.stamp()
        k.e(f"s_mov_b32 s47, {NST//NS}")
        k.L.append(".p2align 6")
        k.lab(f"{name}_loop{tag}")
        for t in range(LT):
            sc = VS[t % 2]
            p = VP[t % 2]
            if (t + 2) % TPS == 0:
                barrier_for_stage(((t + 2) // TPS) % NS)
            if not safe and t % 4 == 0:
                lab = k.newlab("fresc")
                back = k.newlab("fback")
                k.e(f"v_cmp_lt_f32 vcc, 0x53800000, v{VLC}")
                k.e(f"s_cbranch_vccnz {lab}")
                k.lab(back)
                frescue.append((lab, back, t))
            k.e("s_waitcnt lgkmcnt(4)")
            sm = smfma(t + 1)
            pvm = pv(t - 1)
            rd = kreads((t + 2) % LT) + vreads(t % LT)
            va = []
            for r in range(16):
                va.append((f"v_exp_f32 v{sc+r}, v{sc+r}", 8.5))
                if r >= 3 and r % 2 == 1:
                    j = (r - 3) // 2
                    va.append((f"v_cvt_pk_bf16_f32 v{p+j}, v{sc+2*j}, v{sc+2*j+1}", 4.5))
            va.append((f"v_cvt_pk_bf16_f32 v{p+7}, v{sc+14}, v{sc+15}", 4.5))
            if safe:
                mx = maxtree(sc)
                k.e(sm[0])
                for x in mx[:4]:
                    k.e(x)
                k.e(sm[1])
                for x in mx[4:]:
                    k.e(x)
                lab = k.newlab("resc")
                back = k.newlab("back")
                k.e(f"v_cmp_lt_f32 vcc, {THR}, v{VM}")
                k.e(f"s_cbranch_vccnz {lab}")
                k.lab(back)
                rescue.append((lab, back, t))
                mf = pvm
                pre_wait = 0
            else:
                mf = sm + pvm
                pre_wait = 2
            tot = sum(c for _, c in va)
            nseg = len(mf)
            vi = 0
            acc_c = 0.0
            ri = 0
            for j, m in enumerate(mf):
                if j == pre_wait:
                    k.e("s_waitcnt lgkmcnt(0)")
                    if not safe and t % 4 == 3:
                        k.e(f"v_mov_b32 v{VLC}, v{VL}")
                k.e(m)
                tgt = tot * (j + 1) / nseg
                first_in_seg = True
                while vi < len(va) and (acc_c + va[vi][1] / 2 <= tgt or j == nseg - 1):
                    k.e(va[vi][0])
                    acc_c += va[vi][1]
                    vi += 1
                    if j >= pre_wait and ri < len(rd) and first_in_seg:
                        n_r = 2 if (j - pre_wait) in (0, 2) else 1
                        for _ in range(n_r):
                            if ri < len(rd):
                                k.e(rd[ri]); ri += 1
                        first_in_seg = False
            while ri < len(rd):
                k.e(rd[ri]); ri += 1
        k.e("s_sub_u32 s47, s47, 1")
        k.e("s_cmp_lg_u32 s47, 0")
        k.e(f"s_cbranch_scc1 {name}_loop{tag}")
        if not safe:
            k.stamp()
        k.e("s_waitcnt lgkmcnt(0)")
        for x in pv(LT - 1):
            k.e(x)
        k.e("s_nop 15")
        k.e("s_nop 3")
        k.e(f"v_rcp_f32 v{VM}, v{VL}")
        k.e("s_nop 0")
        for r in range(16):
            k.e(f"v_mul_f32 v{VO+r}, v{VO+r}, v{VM}")

    if not FORCE_SAFE:
        body(False)
        k.e(f"v_cmp_ngt_f32 vcc, 0x71800000, v{VL}")
        k.e("s_nop 1")
        k.e(f"v_cndmask_b32 v{VM}, 0, 1, vcc")
        k.e(f"v_mov_b32 v{VM+2}, 0x7f800000")
        for r in range(16):
            k.e(f"v_and_b32 v{VM+1}, 0x7f800000, v{VO+r}")
            k.e(f"v_cmp_eq_u32 vcc, v{VM+1}, v{VM+2}")
            k.e("s_nop 1")
            k.e(f"v_cndmask_b32 v{VM}, v{VM}, 1, vcc")
        k.e(f"v_cmp_ne_u32 vcc, 0, v{VM}")
        k.e("s_cmp_lg_u64 vcc, 0")
        k.e("s_cselect_b32 s31, 1, 0")
        k.e(f"v_mov_b32 v{VM}, s31")
        k.e(f"v_mov_b32 v{VM+1}, {FLAG}")
        k.e("s_lshl_b32 s31, s30, 2")
        k.e(f"v_add_u32 v{VM+1}, s31, v{VM+1}")
        k.e(f"ds_write_b32 v{VM+1}, v{VM}")
        k.e("s_waitcnt vmcnt(0) lgkmcnt(0)")
        k.e("s_barrier")
        k.e(f"v_mov_b32 v{VM+1}, {FLAG}")
        k.e(f"ds_read_b128 v[{VP[0]}:{VP[0]+3}], v{VM+1}")
        k.e(f"ds_read_b128 v[{VP[0]+4}:{VP[0]+7}], v{VM+1} offset:16")
        k.e("s_waitcnt lgkmcnt(0)")
        k.e(f"v_or3_b32 v{VM}, v{VP[0]}, v{VP[0]+1}, v{VP[0]+2}")
        k.e(f"v_or3_b32 v{VM}, v{VM}, v{VP[0]+3}, v{VP[0]+4}")
        k.e(f"v_or3_b32 v{VM}, v{VM}, v{VP[0]+5}, v{VP[0]+6}")
        k.e(f"v_or_b32 v{VM}, v{VM}, v{VP[0]+7}")
        k.e("s_nop 0")
        k.e(f"v_readfirstlane_b32 s31, v{VM}")
        k.e("s_cmp_eq_u32 s31, 0")
        k.e(f"s_cbranch_scc1 {name}_store")
        k.e("s_barrier")
        start_loads()
    body(True)
    k.lab(f"{name}_store")
    P = VS[0]
    for g in range(4):
        k.e(f"v_cvt_pk_bf16_f32 v{P+2*g}, v{VO+4*g}, v{VO+4*g+1}")
        k.e(f"v_cvt_pk_bf16_f32 v{P+2*g+1}, v{VO+4*g+2}, v{VO+4*g+3}")
    k.e("s_nop 1")
    for gp in range(2):
        k.e(f"v_permlane32_swap_b32 v{P+4*gp}, v{P+4*gp+2}")
        k.e(f"v_permlane32_swap_b32 v{P+4*gp+1}, v{P+4*gp+3}")
    for gp in range(2):
        k.e(f"buffer_store_dwordx4 v[{P+4*gp}:{P+4*gp+3}], v{VT+4}, s[20:23], 0 offen offset:{gp*32}")
    k.e("s_waitcnt vmcnt(0)") if STAMP else None
    k.stamp()
    k.stamp_flush(30, VT)
    k.e("s_endpgm")
    for lab, back, t in rescue:
        sc = VS[t % 2]
        sn = VS[(t + 1) % 2]
        pp = VP[(t - 1) % 2]
        k.lab(lab)
        k.e(f"v_mov_b32 v{VM+1}, v{VM}")
        k.e("s_nop 1")
        k.e(f"v_permlane32_swap_b32 v{VM}, v{VM+1}")
        k.e(f"v_max_f32 v{VM}, v{VM}, v{VM+1}")
        k.e(f"v_max_f32 v{VM}, 0, v{VM}")
        k.e(f"v_ceil_f32 v{VM}, v{VM}")
        k.e("s_nop 15")
        k.e("s_nop 15")
        k.e(f"v_cvt_i32_f32 v{VM+2}, v{VM}")
        k.e(f"v_sub_u32 v{VM+2}, 0, v{VM+2}")
        k.e(f"v_ldexp_f32 v{VM+1}, 1.0, v{VM+2}")
        for r in range(16):
            k.e(f"v_sub_f32 v{sc+r}, v{sc+r}, v{VM}")
            k.e(f"v_sub_f32 v{VC+r}, v{VC+r}, v{VM}")
            k.e(f"v_sub_f32 v{sn+r}, v{sn+r}, v{VM}")
            k.e(f"v_mul_f32 v{VO+r}, v{VO+r}, v{VM+1}")
            k.e(f"v_mul_f32 v{VL+r}, v{VL+r}, v{VM+1}")
        for j in range(8):
            k.e(f"v_lshlrev_b32 v{VM+2}, 16, v{pp+j}")
            k.e(f"v_and_b32 v{VM+3}, 0xffff0000, v{pp+j}")
            k.e(f"v_mul_f32 v{VM+2}, v{VM+2}, v{VM+1}")
            k.e(f"v_mul_f32 v{VM+3}, v{VM+3}, v{VM+1}")
            k.e(f"v_cvt_pk_bf16_f32 v{pp+j}, v{VM+2}, v{VM+3}")
        k.e("s_nop 1")
        k.e(f"s_branch {back}")
    for lab, back, t in frescue:
        sc = VS[t % 2]
        pp = VP[(t - 1) % 2]
        k.lab(lab)
        k.e(f"v_frexp_exp_i32_f32 v{VM+2}, v{VLC}")
        k.e(f"v_max_i32 v{VM+2}, 0, v{VM+2}")
        k.e("s_nop 15")
        k.e("s_nop 15")
        k.e(f"v_cvt_f32_i32 v{VM}, v{VM+2}")
        k.e(f"v_sub_u32 v{VM+2}, 0, v{VM+2}")
        k.e(f"v_ldexp_f32 v{VM+1}, 1.0, v{VM+2}")
        for r in range(16):
            k.e(f"v_sub_f32 v{sc+r}, v{sc+r}, v{VM}")
            k.e(f"v_sub_f32 v{VC+r}, v{VC+r}, v{VM}")
            k.e(f"v_mul_f32 v{VO+r}, v{VO+r}, v{VM+1}")
            k.e(f"v_mul_f32 v{VL+r}, v{VL+r}, v{VM+1}")
        for j in range(8):
            k.e(f"v_lshlrev_b32 v{VM+2}, 16, v{pp+j}")
            k.e(f"v_and_b32 v{VM+3}, 0xffff0000, v{pp+j}")
            k.e(f"v_mul_f32 v{VM+2}, v{VM+2}, v{VM+1}")
            k.e(f"v_mul_f32 v{VM+3}, v{VM+3}, v{VM+1}")
            k.e(f"v_cvt_pk_bf16_f32 v{pp+j}, v{VM+2}, v{VM+3}")
        k.e(f"v_mov_b32 v{VLC}, 0")
        k.e("s_nop 1")
        k.e(f"s_branch {back}")
    k.lab(f"{name}_end")
    return k, dict(grid=NWG, block=512, lds=NS * STAGE + 256, vgpr=NV)
```

```python
from common import *
import os
import struct
def f32bits(x):
    return struct.unpack("<I", struct.pack("<f", x))[0]
QSCALE = f32bits((32 ** -0.5) * 1.4426950408889634)


def gen_gemm(name, kind, WM, WN, MT, NT, K, NS, U, x_ws_off, ldw, LW=False):
    k = Kern(name)
    NWC = WM * WN
    NW = NWC
    BM = 32 * MT * WM
    T = K // 64
    NU = 4 // U
    XB = BM * 128
    two = (kind == 'gu')
    if two:
        assert WN == 1
        RW = 32 * NT
        REGB = 64 * RW
        UOFF = REGB + 128
        assert (REGB % 256) == 0
        WB = UOFF + REGB
        NBLK_COLS = 16 * NT
        WPR = NW // 2
    else:
        RW = 64 * NT * WN
        REGB = 64 * RW
        WB = REGB
        NBLK_COLS = 32 * NT * WN
        WPR = NW
    CPR = RW // 16
    NCHW = REGB // 1024
    STAGE = (XB + WB + 255) // 256 * 256
    LDS = STAGE * NS
    assert (XB // 1024) % NW == 0
    nx = XB // 1024 // NW
    nw = (NCHW + WPR - 1) // WPR
    G = nx + nw
    nmb = S // BM
    ncols = {'qkv': 3072, 'gu': F, 'wo': 1024, 'down': 1024}[kind]
    nnb = ncols // NBLK_COLS
    NWG = nmb * nnb
    assert NWG == 256, NWG

    v = 1
    def alloc(n, align=1):
        nonlocal v
        v = (v + align - 1) // align * align
        r = v
        v += n
        return r
    VT = alloc(6)
    VDX = alloc(nx)
    VDW = alloc(nw)
    VXA = alloc(4 * NS)
    VWA = alloc(NS)
    nfr = U * (4 * MT + 4 * NT)
    VF = [alloc(nfr, 4), alloc(nfr, 4)]
    def xfrag(s, kl, mt):
        return VF[s] + kl * (4 * MT + 4 * NT) + 4 * mt
    def wfrag(s, kl, nt):
        return VF[s] + kl * (4 * MT + 4 * NT) + 4 * MT + 4 * nt
    NA = 16 * MT * NT
    need_e = 64
    if 2 * nfr >= need_e:
        VE = VF[0]
    else:
        VE = alloc(need_e, 4)
    maxregs = 512 // ((2 * NW if LW else NW) // 4)
    ACCV = (v + 3) // 4 * 4 + NA <= min(256, maxregs)
    if ACCV:
        VACC = alloc(NA, 4)
        def accr(mt, nt, r=None):
            a = VACC + (mt * NT + nt) * 16
            return f"v[{a}:{a+15}]" if r is None else f"v{a+r}"
    else:
        def accr(mt, nt, r=None):
            a = (mt * NT + nt) * 16
            return f"a[{a}:{a+15}]" if r is None else f"a{a+r}"
    NV = v
    assert NV <= 256 and (NV + 3) // 4 * 4 + (0 if ACCV else NA) <= maxregs, (NV, NA)

    K2 = K * 2
    t0, t1, t2, t3 = VT, VT + 1, VT + 2, VT + 3
    k.e(f"s_cmp_ge_u32 s2, {NWG}")
    k.e(f"s_cbranch_scc1 {name}_end")
    k.stamp()
    wka = {'qkv': KA_WQKV, 'wo': KA_WO, 'gu': KA_WG, 'down': KA_WD}[kind]
    k.e(f"s_load_dwordx2 s[4:5], s[0:1], {KA_WS}")
    k.e(f"s_load_dwordx2 s[6:7], s[0:1], {wka}")
    if two:
        k.e(f"s_load_dwordx2 s[32:33], s[0:1], {KA_WU}")
    if kind == 'wo':
        k.e(f"s_load_dwordx2 s[34:35], s[0:1], {KA_X}")
    if kind == 'down':
        k.e(f"s_load_dwordx2 s[34:35], s[0:1], {KA_OUT}")
    k.e(f"v_lshrrev_b32 v{VT}, 6, v0")
    k.e(f"v_and_b32 v0, 63, v0")
    k.e("s_nop 0")
    k.e(f"v_readfirstlane_b32 s30, v{VT}")
    if LW:
        k.e(f"s_lshr_b32 s48, s30, {NW.bit_length()-1}")
        k.e(f"s_and_b32 s30, s30, {NW-1}")
    k.e("s_and_b32 s31, s2, 7")
    k.e("s_lshr_b32 s36, s2, 3")
    if nmb == 8:
        k.e("s_and_b32 s28, s31, 1")
        k.e("s_lshr_b32 s29, s31, 1")
    else:
        assert nmb == 16
        k.e("s_and_b32 s28, s31, 3")
        k.e("s_lshr_b32 s29, s31, 2")
    k.e("s_lshl_b32 s28, s28, 2")
    k.e("s_and_b32 s37, s36, 3")
    k.e("s_add_u32 s28, s28, s37")
    k.e("s_lshl_b32 s29, s29, 3")
    k.e("s_lshr_b32 s37, s36, 2")
    k.e("s_add_u32 s29, s29, s37")

    k.e(f"v_lshrrev_b32 v{t0}, 3, v0")
    k.e(f"v_and_b32 v{t1}, 7, v0")
    k.e(f"v_lshrrev_b32 v{t2}, 1, v{t0}")
    k.e(f"v_xor_b32 v{t2}, v{t2}, v{t1}")
    k.e(f"v_xor_b32 v{t3}, 4, v{t2}")
    k.e(f"s_mul_i32 s31, s30, {nx*8}")
    k.e(f"s_mul_i32 s36, s28, {BM}")
    k.e("s_add_u32 s36, s36, s31")
    k.e(f"v_add_u32 v{t0}, s36, v{t0}")
    k.e(f"s_mov_b32 s37, {K2}")
    k.e(f"v_mul_lo_u32 v{t0}, v{t0}, s37")
    if nx % 2 == 1:
        k.e("s_and_b32 s31, s30, 1")
        k.e("s_cmp_eq_u32 s31, 1")
        k.e("s_cselect_b64 s[38:39], -1, 0")
        k.e(f"v_cndmask_b32 v{t1}, v{t2}, v{t3}, s[38:39]")
        k.e(f"v_cndmask_b32 v{t3}, v{t3}, v{t2}, s[38:39]")
        k.e(f"v_mov_b32 v{t2}, v{t1}")
    for i in range(nx):
        cc = t2 if i % 2 == 0 else t3
        k.e(f"v_lshl_add_u32 v{VDX+i}, v{cc}, 4, v{t0}")
        if i:
            k.e(f"v_add_u32 v{VDX+i}, {8*i*K2}, v{VDX+i}")
    magic = (65536 + CPR - 1) // CPR
    if two:
        k.e(f"s_and_b32 s31, s30, {WPR-1}")
    else:
        k.e("s_mov_b32 s31, s30")
    k.e(f"s_mul_i32 s31, s31, {nw}")
    k.e(f"s_mul_i32 s38, s29, {NBLK_COLS*2}")
    SW = 50
    if two:
        k.e(f"s_cmp_ge_u32 s30, {WPR}")
        k.e(f"s_cselect_b32 s39, {UOFF}, 0")
        k.e(f"s_add_u32 s39, s39, {XB}")
    else:
        k.e(f"s_mov_b32 s39, {XB}")
    for i in range(nw):
        k.e(f"s_add_u32 s37, s31, {i}")
        k.e(f"s_min_u32 s37, s37, {NCHW-1}")
        k.e(f"s_lshl_b32 s{SW+i}, s37, 10")
        k.e(f"s_add_u32 s{SW+i}, s{SW+i}, s39")
        k.e("s_lshl_b32 s37, s37, 6")
        k.e(f"v_add_u32 v{t0}, s37, v0")
        k.e(f"v_mul_u32_u24 v{t1}, {magic}, v{t0}")
        k.e(f"v_lshrrev_b32 v{t1}, 16, v{t1}")
        k.e(f"v_mul_u32_u24 v{t2}, {CPR}, v{t1}")
        k.e(f"v_sub_u32 v{t2}, v{t0}, v{t2}")
        if RW == 128:
            k.e(f"v_lshlrev_b32 v{t3}, 1, v{t1}")
            k.e(f"v_and_b32 v{t3}, 4, v{t3}")
            k.e(f"v_xor_b32 v{t2}, v{t2}, v{t3}")
        k.e(f"v_mul_u32_u24 v{t1}, {ldw*2}, v{t1}")
        k.e(f"v_lshl_add_u32 v{t1}, v{t2}, 4, v{t1}")
        k.e(f"v_add_u32 v{VDW+i}, s38, v{t1}")
    k.e(f"s_mul_i32 s40, s30, {nx*1024}")
    k.e("s_waitcnt lgkmcnt(0)")
    k.srd_off(8, 4, 5, x_ws_off, S * K2)
    wbytes = K * ldw * 2
    if two:
        k.e(f"s_cmp_ge_u32 s30, {WPR}")
        k.e("s_cselect_b32 s6, s32, s6")
        k.e("s_cselect_b32 s7, s33, s7")
    k.srd(12, 6, 7, wbytes)

    def dma_stage(t, b):
        res = []
        if t is not None:
            res.append([f"s_mov_b32 s42, {t*128}", f"s_mov_b32 s43, {t*64*ldw*2}"])
        for i in range(nx):
            res.append([f"s_add_u32 m0, s40, {b*STAGE + i*1024}",
                        "s_nop 0",
                        f"buffer_load_dwordx4 v{VDX+i}, s[8:11], s42 offen lds"])
        for i in range(nw):
            res.append([f"s_add_u32 m0, s{SW+i}, {b*STAGE}",
                        "s_nop 0",
                        f"buffer_load_dwordx4 v{VDW+i}, s[12:15], s43 offen lds"])
        if t is None and not os.environ.get('EXP_HOT'):
            res.append([f"s_add_u32 s42, s42, 128", f"s_add_u32 s43, s43, {64*ldw*2}"])
        if t is None and os.environ.get('EXP_NODMA'):
            res = []
        return res

    if LW:
        k.e("s_cmp_eq_u32 s48, 0")
        k.e(f"s_cbranch_scc1 {name}_compute")
        for t in range(min(NS, T)):
            for grp in dma_stage(t, t % NS):
                for s_ in grp:
                    k.e(s_)
        k.e(f"s_waitcnt vmcnt({G*(min(NS,T)-1)})")
        k.e("s_barrier")
        n_it_l = (T - NS) // NS
        def loader_stage(t, b, rolled):
            if rolled or t + 1 < T:
                if rolled:
                    cnt = G * (NS - 2)
                else:
                    issued = min(T - 1, t + NS - 1)
                    cnt = G * (issued - (t + 1))
                k.e(f"s_waitcnt vmcnt({cnt})")
                k.e("s_barrier")
            if rolled:
                grps = dma_stage(None, b)
            elif t + NS < T:
                grps = dma_stage(t + NS, b)
            else:
                grps = []
            for grp in grps:
                for s_ in grp:
                    k.e(s_)
        if n_it_l > 0:
            k.e(f"s_mov_b32 s42, {NS*128}")
            k.e(f"s_mov_b32 s43, {NS*64*ldw*2}")
            k.e(f"s_mov_b32 s47, {n_it_l}")
            k.lab(f"{name}_lloop")
            for b in range(NS):
                loader_stage(b, b, True)
            k.e("s_sub_u32 s47, s47, 1")
            k.e("s_cmp_lg_u32 s47, 0")
            k.e(f"s_cbranch_scc1 {name}_lloop")
        for t in range(n_it_l * NS, T):
            loader_stage(t, t % NS, False)
        k.e("s_endpgm")
        k.lab(f"{name}_compute")
    else:
        for grp in dma_stage(0, 0):
            for s_ in grp:
                k.e(s_)

    if kind == 'qkv':
        k.srd_off(16, 4, 5, WS_Q, 12 * MB)
    elif kind == 'wo':
        k.srd_off(16, 4, 5, WS_X1, S * D * 2)
        k.srd(20, 34, 35, S * D * 2)
        k.srd_off(24, 4, 5, WS_MOD + 2 * 4096, 4096)
    elif kind == 'gu':
        k.srd_off(16, 4, 5, WS_HH, S * F * 2)
    else:
        k.srd(16, 34, 35, S * D * 2)
        k.srd_off(20, 4, 5, WS_X1, S * D * 2)
        k.srd_off(24, 4, 5, WS_MOD + 5 * 4096, 4096)

    if WN == 1:
        k.e("s_mov_b32 s44, s30")
        k.e("s_mov_b32 s45, 0")
    else:
        assert WN == 2
        k.e("s_lshr_b32 s44, s30, 1")
        k.e("s_and_b32 s45, s30, 1")
    k.e(f"v_and_b32 v{t0}, 31, v0")
    k.e(f"v_lshrrev_b32 v{t1}, 5, v0")
    k.e(f"v_bfe_u32 v{t2}, v{t0}, 1, 3")
    k.e(f"v_xor_b32 v{t2}, v{t2}, v{t1}")
    k.e(f"s_mul_i32 s31, s44, {MT*32*128}")
    k.e(f"v_lshlrev_b32 v{t3}, 7, v{t0}")
    k.e(f"v_lshl_add_u32 v{t3}, v{t2}, 4, v{t3}")
    k.e(f"v_add_u32 v{t3}, s31, v{t3}")
    for b in range(NS):
        for kk in range(4):
            r = VXA + 4 * b + kk
            if kk:
                k.e(f"v_xor_b32 v{r}, {kk*32}, v{t3}")
                if b:
                    k.e(f"v_add_u32 v{r}, {b*STAGE}, v{r}")
            else:
                if b:
                    k.e(f"v_add_u32 v{r}, {b*STAGE}, v{t3}")
                else:
                    k.e(f"v_mov_b32 v{r}, v{t3}")
    k.e(f"v_and_b32 v{t0}, 15, v0")
    k.e(f"v_bfe_u32 v{t1}, v0, 4, 1")
    k.e(f"v_lshrrev_b32 v{t2}, 5, v0")
    k.e(f"v_lshrrev_b32 v{t3}, 2, v{t0}")
    k.e(f"v_lshl_add_u32 v{t3}, v{t2}, 3, v{t3}")
    k.e(f"v_mul_u32_u24 v{t3}, {RW}, v{t3}")
    k.e(f"v_and_b32 v{t2}, 3, v{t0}")
    k.e(f"v_lshl_add_u32 v{t3}, v{t2}, 3, v{t3}")
    if two:
        k.e(f"v_mul_u32_u24 v{t1}, {UOFF}, v{t1}")
        k.e(f"v_add_u32 v{t3}, v{t3}, v{t1}")
    else:
        k.e(f"v_lshl_add_u32 v{t3}, v{t1}, 5, v{t3}")
        k.e(f"s_mul_i32 s31, s45, {NT*64}")
        k.e(f"v_add_u32 v{t3}, s31, v{t3}")
        if RW == 128:
            k.e(f"v_lshlrev_b32 v{t2}, 3, v{t0}")
            k.e(f"v_and_b32 v{t2}, 64, v{t2}")
            k.e(f"v_xor_b32 v{t3}, v{t3}, v{t2}")
    for b in range(NS):
        k.e(f"v_add_u32 v{VWA+b}, {XB + b*STAGE}, v{t3}")
    TCB = 32 if two else 64

    for t in range(1, min(NS, T)):
        if LW:
            break
        for grp in dma_stage(t, t % NS):
            for s_ in grp:
                k.e(s_)
    for i in range(NA):
        if ACCV:
            k.e(f"v_mov_b32 v{VACC+i}, 0")
        else:
            k.e(f"v_accvgpr_write_b32 a{i}, 0")

    def reads(t, u):
        b = t % NS
        s_ = (t * NU + u) % 2
        out = []
        for kl in range(U):
            kk = u * U + kl
            for mt in range(MT):
                r = xfrag(s_, kl, mt)
                out.append(f"ds_read_b128 v[{r}:{r+3}], v{VXA+4*b+kk} offset:{mt*4096}")
            for nt in range(NT):
                r = wfrag(s_, kl, nt)
                for rd in range(2):
                    off = kk * 16 * RW + rd * 4 * RW + nt * TCB
                    out.append(f"ds_read_b64_tr_b16 v[{r+2*rd}:{r+2*rd+1}], v{VWA+b} offset:{off}")
        return out

    k.stamp()
    if not LW:
        k.e(f"s_waitcnt vmcnt({G*(min(NS,T)-1)})")
    k.e("s_barrier")
    k.stamp()
    for s_ in reads(0, 0):
        k.e(s_)

    assert (NS * NU) % 2 == 0
    n_it = (T - NS) // NS
    def emit_stage(t, b, rolled):
        for u in range(NU):
            fill = []
            last_u = (u == NU - 1)
            if last_u and (rolled or t + 1 < T):
                if rolled:
                    cnt = G * (NS - 2)
                else:
                    issued = min(T - 1, t + NS - 1)
                    cnt = G * (issued - (t + 1))
                if LW:
                    k.e("s_waitcnt lgkmcnt(0)")
                else:
                    k.e(f"s_waitcnt vmcnt({cnt}) lgkmcnt(0)")
                k.e("s_barrier")
            else:
                k.e("s_waitcnt lgkmcnt(0)")
            if not last_u:
                fill += reads(t, u + 1)
            elif rolled or t + 1 < T:
                fill += reads(t + 1, 0)
            if LW:
                pass
            elif last_u and rolled:
                fill += dma_stage(None, b)
            elif last_u and t + NS < T:
                fill += dma_stage(t + NS, b)
            mf = []
            s_ = (t * NU + u) % 2
            for kl in range(U):
                for nt in range(NT):
                    for mt in range(MT):
                        a = accr(mt, nt)
                        wr_, xr_ = wfrag(s_, kl, nt), xfrag(s_, kl, mt)
                        mf.append(f"v_mfma_f32_32x32x16_bf16 {a}, v[{wr_}:{wr_+3}], v[{xr_}:{xr_+3}], {a}")
            for s2_ in interleave(mf, fill):
                k.e(s2_)
    if n_it > 0:
        k.e(f"s_mov_b32 s42, {NS*128}")
        k.e(f"s_mov_b32 s43, {NS*64*ldw*2}")
        k.e(f"s_mov_b32 s47, {n_it}")
        k.L.append(".p2align 6")
        k.lab(f"{name}_loop")
        for b in range(NS):
            emit_stage(b, b, True)
        k.e("s_sub_u32 s47, s47, 1")
        k.e("s_cmp_lg_u32 s47, 0")
        k.e(f"s_cbranch_scc1 {name}_loop")
    k.stamp()
    for t in range(n_it * NS, T):
        emit_stage(t, t % NS, False)
    k.stamp()

    E = VE
    k.e(f"v_and_b32 v{t0}, 31, v0")
    k.e(f"v_lshrrev_b32 v{t1}, 5, v0")
    k.e(f"s_mul_i32 s36, s28, {BM}")
    k.e(f"s_mul_i32 s31, s44, {MT*32}")
    k.e("s_add_u32 s36, s36, s31")
    k.e(f"v_add_u32 v{t0}, s36, v{t0}")

    def getacc(mt, nt):
        if ACCV:
            return lambda r: accr(mt, nt, r)
        for r in range(16):
            k.e(f"v_accvgpr_read_b32 v{E+r}, {accr(mt, nt, r)}")
        return lambda r: f"v{E+r}"

    if kind == 'qkv':
        k.e(f"v_lshlrev_b32 v{t2}, 6, v{t0}")
        k.e(f"v_lshl_add_u32 v{t2}, v{t1}, 4, v{t2}")
        for nt in range(NT):
            k.e(f"s_mul_i32 s37, s29, {NT}")
            k.e(f"s_add_u32 s37, s37, {nt}")
            k.e("s_cmp_lt_u32 s37, 32")
            k.e(f"s_cselect_b32 s{54+nt}, {QSCALE:#x}, 1.0")
            k.e(f"s_lshl_b32 s{57+nt}, s37, 17")
        k.e("s_nop 15")
        for mt in range(MT):
            for nt in range(NT):
                A = getacc(mt, nt)
                for r in range(16):
                    k.e(f"v_mul_f32 {A(r)}, s{54+nt}, {A(r)}")
                P = E + 16 + 8 * ((mt * NT + nt) % 4)
                for g in range(4):
                    k.e(f"v_cvt_pk_bf16_f32 v{P+2*g}, {A(4*g)}, {A(4*g+1)}")
                    k.e(f"v_cvt_pk_bf16_f32 v{P+2*g+1}, {A(4*g+2)}, {A(4*g+3)}")
                k.e("s_nop 1")
                for gp in range(2):
                    k.e(f"v_permlane32_swap_b32 v{P+4*gp}, v{P+4*gp+2}")
                    k.e(f"v_permlane32_swap_b32 v{P+4*gp+1}, v{P+4*gp+3}")
                for gp in range(2):
                    k.e(f"buffer_store_dwordx4 v[{P+4*gp}:{P+4*gp+3}], v{t2}, s[16:19], s{57+nt} offen offset:{mt*2048 + gp*32}")
    elif kind == 'gu':
        k.e(f"s_mov_b32 s37, {F*2}")
        k.e(f"v_mul_lo_u32 v{t2}, v{t0}, s37")
        k.e(f"v_lshl_add_u32 v{t2}, v{t1}, 4, v{t2}")
        k.e(f"s_mul_i32 s37, s29, {NBLK_COLS*2}")
        k.e(f"v_add_u32 v{t2}, s37, v{t2}")
        k.e(f"s_mov_b32 s46, {32*F*2}")
        k.e("s_nop 15")
        for mt in range(MT):
            for nt in range(NT):
                A = getacc(mt, nt)
                C = E + 16
                for r in range(0, 16, 2):
                    k.e(f"v_cvt_pk_bf16_f32 v{C+r//2}, {A(r)}, {A(r+1)}")
                for r in range(0, 16, 2):
                    k.e(f"v_lshlrev_b32 {A(r)}, 16, v{C+r//2}")
                    k.e(f"v_and_b32 {A(r+1)}, 0xffff0000, v{C+r//2}")
                for r in range(8):
                    k.e(f"v_mul_f32 {A(r)}, {A(r)}, {A(8+r)}")
                P = E + 24 + 4 * ((mt * NT + nt) % 4)
                for g in range(2):
                    k.e(f"v_cvt_pk_bf16_f32 v{P+2*g}, {A(4*g)}, {A(4*g+1)}")
                    k.e(f"v_cvt_pk_bf16_f32 v{P+2*g+1}, {A(4*g+2)}, {A(4*g+3)}")
                k.e("s_nop 1")
                k.e(f"v_permlane32_swap_b32 v{P}, v{P+2}")
                k.e(f"v_permlane32_swap_b32 v{P+1}, v{P+3}")
                so = "s46" if mt else "0"
                k.e(f"buffer_store_dwordx4 v[{P}:{P+3}], v{t2}, s[16:19], {so} offen offset:{nt*32}")
    else:
        assert NT == 1
        k.e(f"s_mul_i32 s37, s29, {NBLK_COLS}")
        k.e("s_lshl_b32 s31, s45, 5")
        k.e("s_add_u32 s37, s37, s31")
        k.e(f"v_lshlrev_b32 v{t2}, 11, v{t0}")
        k.e(f"v_lshl_add_u32 v{t2}, v{t1}, 4, v{t2}")
        k.e("s_lshl_b32 s31, s37, 1")
        k.e(f"v_add_u32 v{t2}, s31, v{t2}")
        k.e("s_lshl_b32 s31, s37, 2")
        k.e(f"v_lshlrev_b32 v{t3}, 5, v{t1}")
        k.e(f"v_add_u32 v{t3}, s31, v{t3}")
        k.e(f"s_mov_b32 s46, {32*2048}")
        GV = E + 32
        RV = E + 48
        k.e("s_nop 15")
        for gp in range(2):
            k.e(f"buffer_load_dwordx4 v[{GV+8*gp}:{GV+8*gp+3}], v{t3}, s[24:27], 0 offen offset:{gp*64}")
            k.e(f"buffer_load_dwordx4 v[{GV+8*gp+4}:{GV+8*gp+7}], v{t3}, s[24:27], 0 offen offset:{gp*64+16}")
        for mt in range(MT):
            for gp in range(2):
                so = "s46" if mt else "0"
                r = RV + 8 * mt + 4 * gp
                k.e(f"buffer_load_dwordx4 v[{r}:{r+3}], v{t2}, s[20:23], {so} offen offset:{gp*32}")
        for mt in range(MT):
            A = getacc(mt, 0)
            P = E + 16
            for g in range(4):
                k.e(f"v_cvt_pk_bf16_f32 v{P+2*g}, {A(4*g)}, {A(4*g+1)}")
                k.e(f"v_cvt_pk_bf16_f32 v{P+2*g+1}, {A(4*g+2)}, {A(4*g+3)}")
            k.e("s_nop 1")
            for gp in range(2):
                k.e(f"v_permlane32_swap_b32 v{P+4*gp}, v{P+4*gp+2}")
                k.e(f"v_permlane32_swap_b32 v{P+4*gp+1}, v{P+4*gp+3}")
            if mt == 0:
                k.e("s_waitcnt vmcnt(0)")
            for gp in range(2):
                for j in range(4):
                    p = P + 4 * gp + j
                    g0, g1 = GV + 8 * gp + 2 * j, GV + 8 * gp + 2 * j + 1
                    rr = RV + 8 * mt + 4 * gp + j
                    a0, a1, b0, b1 = E, E + 1, E + 2, E + 3
                    k.e(f"v_lshlrev_b32 v{a0}, 16, v{p}")
                    k.e(f"v_and_b32 v{a1}, 0xffff0000, v{p}")
                    k.e(f"v_mul_f32 v{a0}, v{g0}, v{a0}")
                    k.e(f"v_mul_f32 v{a1}, v{g1}, v{a1}")
                    k.e(f"v_cvt_pk_bf16_f32 v{p}, v{a0}, v{a1}")
                    k.e(f"v_lshlrev_b32 v{a0}, 16, v{p}")
                    k.e(f"v_and_b32 v{a1}, 0xffff0000, v{p}")
                    k.e(f"v_lshlrev_b32 v{b0}, 16, v{rr}")
                    k.e(f"v_and_b32 v{b1}, 0xffff0000, v{rr}")
                    k.e(f"v_add_f32 v{a0}, v{a0}, v{b0}")
                    k.e(f"v_add_f32 v{a1}, v{a1}, v{b1}")
                    k.e(f"v_cvt_pk_bf16_f32 v{rr}, v{a0}, v{a1}")
                so = "s46" if mt else "0"
                r = RV + 8 * mt + 4 * gp
                k.e(f"buffer_store_dwordx4 v[{r}:{r+3}], v{t2}, s[16:19], {so} offen offset:{gp*32}")
    k.e("s_waitcnt vmcnt(0)") if STAMP else None
    k.stamp()
    k.stamp_flush(30, VT)
    k.lab(f"{name}_end")
    return k, dict(grid=NWG, block=64 * NW * (2 if LW else 1), lds=LDS, vgpr=NV, agpr=0 if ACCV else NA)
```

```python
import sys, os
sys.path.insert(0, os.path.dirname(__file__))
from common import *
from k_small import gen_mod, gen_ln
from k_gemm import gen_gemm
from k_attn import gen_attn

HEADER = open('adaLN_cond__mha_block__glu_gated_bilinear__prompt.s.ref').read().split('; Override launch')[0]

def build():
    ks = []
    ks.append(gen_mod())
    ks.append(gen_ln("ln1_kernel", False, 0, WS_H1, 0, True))
    ks.append(gen_gemm("qkv_kernel", 'qkv', 8, 1, 1, 3, 1024, 3, 2, WS_H1, 3072))
    ks.append(gen_attn())
    ks.append(gen_gemm("wo_kernel", 'wo', 2, 2, 2, 1, 1024, 4, 4, WS_O, 1024, LW=True))
    ks.append(gen_ln("ln2_kernel", True, WS_X1, WS_H2, 3))
    ks.append(gen_gemm("gu_kernel", 'gu', 8, 1, 1, 7, 1024, 2, 1, WS_H2, 3584))
    ks.append(gen_gemm("down_kernel", 'down', 2, 2, 2, 1, 3584, 4, 4, WS_HH, 1024, LW=True))
    out = [HEADER.rstrip('\n')]
    for k, p in ks:
        out.append(f"; @launch kernel={k.name} grid=({p['grid']},1,1) block=({p['block']},1,1) lds={p['lds']}")
    out.append('.amdgcn_target "amdgcn-amd-amdhsa--gfx950"')
    out.append(".text")
    kds = []
    for k, p in ks:
        t, kd = k.text(p['vgpr'], p.get('agpr', 0))
        out.append(t)
        kds.append(kd)
    out.append('.section .rodata,"a"')
    for kd in kds:
        out.append(".p2align 6")
        out.append(kd)
    return "\n".join(out) + "\n"

if __name__ == "__main__":
    dst = sys.argv[1] if len(sys.argv) > 1 else 'adaLN_cond__mha_block__glu_gated_bilinear__prompt.s'
    open(dst, 'w').write(build())
    print("wrote", dst, os.path.getsize(dst))
```

```python
from common import *
import os

def gen_attn():
    name = "attn_kernel"
    k = Kern(name)
    NWG = 256
    NS = 4
    SK = int(os.environ.get('ATT_SK', '128'))
    STAGE = 2 * SK * 64
    VOFFL = SK * 64
    NST = S // SK
    TPS = SK // 32
    LT = NS * TPS
    CPW = SK // 128
    FLAG = NS * STAGE
    THR = os.environ.get("ATT_THR", "0x42700000")
    FORCE_SAFE = os.environ.get("ATT_FORCE_SAFE") is not None

    v = 1
    def alloc(n, align=1):
        nonlocal v
        v = (v + align - 1) // align * align
        r = v
        v += n
        return r
    VT = alloc(7)
    VD = alloc(2)
    VKA = alloc(4)
    VVA = alloc(2)
    VQA = alloc(1)
    VQ = alloc(8, 4)
    VONE = alloc(4, 4)
    VS = [alloc(16, 4), alloc(16, 4)]
    VC = alloc(16, 4)
    VO = alloc(16, 4)
    VL = alloc(16, 4)
    VK = [alloc(8, 4), alloc(8, 4)]
    VV = [alloc(8, 4), alloc(8, 4)]
    VP = [alloc(8, 4), alloc(8, 4)]
    VM = alloc(4)
    VLC = alloc(1)
    VPFA = alloc(1)
    VPFD = alloc(4, 4)
    NV = v
    t0, t1, t2, t3 = VT, VT + 1, VT + 2, VT + 3

    k.e(f"s_cmp_ge_u32 s2, {NWG}")
    k.e(f"s_cbranch_scc1 {name}_end")
    k.stamp()
    k.e(f"s_load_dwordx2 s[4:5], s[0:1], {KA_WS}")
    k.e(f"s_load_dwordx2 s[72:73], s[0:1], {KA_WG}")
    k.e(f"s_load_dwordx2 s[74:75], s[0:1], {KA_WU}")
    k.e(f"s_load_dwordx2 s[76:77], s[0:1], {KA_WD}")
    k.e(f"s_load_dwordx2 s[78:79], s[0:1], {KA_WO}")
    k.e(f"v_lshlrev_b32 v{VPFA}, 4, v0")
    k.e("s_lshl_b32 s31, s2, 13")
    k.e(f"v_add_u32 v{VPFA}, s31, v{VPFA}")
    k.e(f"v_lshrrev_b32 v{t0}, 6, v0")
    k.e("v_and_b32 v0, 63, v0")
    k.e("s_nop 0")
    k.e(f"v_readfirstlane_b32 s30, v{t0}")
    k.e("s_and_b32 s28, s2, 31")
    k.e("s_lshr_b32 s29, s2, 5")
    k.e(f"v_lshrrev_b32 v{t0}, 2, v0")
    k.e(f"v_and_b32 v{t1}, 3, v0")
    k.e(f"v_lshrrev_b32 v{t2}, 4, v0")
    k.e(f"v_xor_b32 v{t1}, v{t1}, v{t2}")
    k.e(f"v_lshlrev_b32 v{t0}, 6, v{t0}")
    k.e(f"v_lshl_add_u32 v{t0}, v{t1}, 4, v{t0}")
    k.e(f"s_mul_i32 s40, s30, {1024*CPW}")
    k.e(f"v_add_u32 v{VD}, s40, v{t0}")
    k.e(f"v_lshlrev_b32 v{t0}, 4, v0")
    k.e(f"v_add_u32 v{VD+1}, s40, v{t0}")
    k.e(f"v_and_b32 v{t0}, 31, v0")
    k.e(f"v_lshrrev_b32 v{t1}, 5, v0")
    k.e("s_lshl_b32 s31, s29, 8")
    k.e("s_lshl_b32 s34, s30, 5")
    k.e("s_add_u32 s34, s34, s31")
    k.e(f"v_add_u32 v{t2}, s34, v{t0}")
    k.e(f"v_lshlrev_b32 v{VQA}, 6, v{t2}")
    k.e(f"v_lshl_add_u32 v{VQA}, v{t1}, 4, v{VQA}")
    k.e("s_waitcnt lgkmcnt(0)")
    k.e("s_lshl_b32 s31, s28, 17")
    k.e(f"s_add_u32 s32, s4, s31")
    k.e("s_addc_u32 s33, s5, 0")
    k.srd_off(8, 32, 33, WS_Q, 131072)
    k.srd_off(12, 32, 33, WS_Q + 4 * MB, 131072)
    k.srd_off(16, 32, 33, WS_Q + 8 * MB, 131072)
    k.srd_off(20, 4, 5, WS_O, S * D * 2)
    k.srd(48, 72, 73, D * F * 2)
    k.srd(52, 74, 75, D * F * 2)
    k.srd(56, 76, 77, D * F * 2)
    k.srd(80, 78, 79, D * D * 2)
    PFS = [48, 52, 56, 80]

    def dma_stage(b):
        res = []
        for c in range(CPW):
            res.append([f"s_add_u32 m0, s40, {b*STAGE}",
                        "s_nop 0",
                        f"buffer_load_dwordx4 v{VD}, s[12:15], s42 offen offset:{c*1024} lds"])
            res.append([f"s_add_u32 m0, s40, {b*STAGE + VOFFL}",
                        "s_nop 0",
                        f"buffer_load_dwordx4 v{VD+1}, s[16:19], s42 offen offset:{c*1024} lds"])
        res.append([f"s_add_u32 s42, s42, {SK*64}"])
        return res

    def start_loads():
        k.e("s_mov_b32 s42, 0")
        k.e(f"buffer_load_dwordx4 v[{VQ}:{VQ+3}], v{VQA}, s[8:11], 0 offen")
        k.e(f"buffer_load_dwordx4 v[{VQ+4}:{VQ+7}], v{VQA}, s[8:11], 0 offen offset:32")
        for s_ in range(2):
            for grp in dma_stage(s_):
                for x in grp:
                    k.e(x)
    start_loads()
    k.e(f"v_lshlrev_b32 v{VT+4}, 11, v{t2}")
    k.e(f"v_lshl_add_u32 v{VT+4}, v{t1}, 4, v{VT+4}")
    k.e("s_lshl_b32 s31, s28, 6")
    k.e(f"v_add_u32 v{VT+4}, s31, v{VT+4}")
    k.e(f"v_bfe_u32 v{t2}, v{t0}, 2, 2")
    k.e(f"v_xor_b32 v{t2}, v{t2}, v{t1}")
    k.e(f"v_lshlrev_b32 v{t3}, 6, v{t0}")
    k.e(f"v_lshl_add_u32 v{VKA}, v{t2}, 4, v{t3}")
    k.e(f"v_xor_b32 v{VKA+1}, 32, v{VKA}")
    k.e(f"v_add_u32 v{VKA+2}, 0x10000, v{VKA}")
    k.e(f"v_add_u32 v{VKA+3}, 0x10000, v{VKA+1}")
    k.e(f"v_and_b32 v{t0}, 15, v0")
    k.e(f"v_bfe_u32 v{t2}, v0, 4, 1")
    k.e(f"v_lshrrev_b32 v{t3}, 2, v{t0}")
    k.e(f"v_lshl_add_u32 v{t3}, v{t1}, 2, v{t3}")
    k.e(f"v_lshlrev_b32 v{t3}, 6, v{t3}")
    k.e(f"v_lshl_add_u32 v{t3}, v{t2}, 5, v{t3}")
    k.e(f"v_and_b32 v{t0}, 3, v{t0}")
    k.e(f"v_lshl_add_u32 v{t3}, v{t0}, 3, v{t3}")
    k.e(f"v_add_u32 v{VVA}, {VOFFL}, v{t3}")
    k.e(f"v_add_u32 v{VVA+1}, 0x10000, v{VVA}")
    for i in range(4):
        k.e(f"v_mov_b32 v{VONE+i}, 0x3f803f80")

    def kreads(t):
        b = (t // TPS) % NS
        off = b * STAGE + (t % TPS) * 2048
        hi = 2 if off >= 65536 else 0
        off -= 65536 * (hi // 2)
        r = VK[t % 2]
        return [f"ds_read_b128 v[{r}:{r+3}], v{VKA+hi} offset:{off}",
                f"ds_read_b128 v[{r+4}:{r+7}], v{VKA+1+hi} offset:{off}"]

    def vreads(t):
        b = (t // TPS) % NS
        off = b * STAGE + (t % TPS) * 2048
        r = VV[t % 2]
        out = []
        for s_ in range(2):
            for rd in range(2):
                o = off + (16 * s_ + 8 * rd) * 64
                hi = 1 if o >= 65536 else 0
                o2 = o - 65536 * hi
                out.append(f"ds_read_b64_tr_b16 v[{r+4*s_+2*rd}:{r+4*s_+2*rd+1}], v{VVA+hi} offset:{o2}")
        return out

    def smfma(t, first=False):
        r = VK[t % 2]
        s_ = VS[t % 2]
        c = "0" if first else f"v[{VC}:{VC+15}]"
        return [f"v_mfma_f32_32x32x16_bf16 v[{s_}:{s_+15}], v[{r}:{r+3}], v[{VQ}:{VQ+3}], {c}",
                f"v_mfma_f32_32x32x16_bf16 v[{s_}:{s_+15}], v[{r+4}:{r+7}], v[{VQ+4}:{VQ+7}], v[{s_}:{s_+15}]"]

    def pv(t):
        vr = VV[t % 2]
        p = VP[t % 2]
        return [f"v_mfma_f32_32x32x16_bf16 v[{VO}:{VO+15}], v[{vr}:{vr+3}], v[{p}:{p+3}], v[{VO}:{VO+15}]",
                f"v_mfma_f32_32x32x16_bf16 v[{VL}:{VL+15}], v[{VONE}:{VONE+3}], v[{p}:{p+3}], v[{VL}:{VL+15}]",
                f"v_mfma_f32_32x32x16_bf16 v[{VO}:{VO+15}], v[{vr+4}:{vr+7}], v[{p+4}:{p+7}], v[{VO}:{VO+15}]",
                f"v_mfma_f32_32x32x16_bf16 v[{VL}:{VL+15}], v[{VONE}:{VONE+3}], v[{p+4}:{p+7}], v[{VL}:{VL+15}]"]

    def barrier_for_stage(s_, pf=None):
        extra = 2 if pf is not None else 0
        k.e(f"s_waitcnt vmcnt({2*CPW+extra}) lgkmcnt(0)")
        k.e("s_barrier")
        for grp in dma_stage((s_ + 2) % NS):
            for x in grp:
                k.e(x)
        if pf is not None:
            sr = PFS[pf]
            k.e(f"buffer_load_dwordx4 v[{VPFD}:{VPFD+3}], v{VPFA}, s[{sr}:{sr+3}], s46 offen")

    def maxtree(sc):
        mx = [f"v_max3_f32 v{VM}, v{sc}, v{sc+1}, v{sc+2}"]
        for r in range(3, 15, 2):
            mx.append(f"v_max3_f32 v{VM}, v{VM}, v{sc+r}, v{sc+r+1}")
        mx.append(f"v_max_f32 v{VM}, v{VM}, v{sc+15}")
        return mx

    rescue = []
    frescue = []

    def body(safe):
        tag = "s" if safe else "f"
        for i in range(16):
            k.e(f"v_mov_b32 v{VO+i}, 0")
            k.e(f"v_mov_b32 v{VL+i}, 0")
        for i in range(8):
            k.e(f"v_mov_b32 v{VP[1]+i}, 0")
            k.e(f"v_mov_b32 v{VV[1]+i}, 0")
        k.e(f"v_mov_b32 v{VLC}, 0")
        k.e("s_mov_b32 s46, 0")
        if safe:
            barrier_for_stage(0)
        else:
            k.e(f"s_waitcnt vmcnt({2*CPW}) lgkmcnt(0)")
            k.e("s_barrier")
            k.e(f"buffer_load_dwordx4 v[{VPFD}:{VPFD+3}], v{VPFA}, s[{PFS[3]}:{PFS[3]+3}], s46 offen")
            for grp in dma_stage(2 % NS):
                for x in grp:
                    k.e(x)
            k.e(f"buffer_load_dwordx4 v[{VPFD}:{VPFD+3}], v{VPFA}, s[{PFS[3]}:{PFS[3]+3}], s46 offen")
        for x in kreads(0) + kreads(1):
            k.e(x)
        k.e("s_waitcnt lgkmcnt(2)")
        for x in smfma(0, first=True):
            k.e(x)
        sc = VS[0]
        k.e("s_nop 15")
        for x in maxtree(sc):
            k.e(x)
        k.e(f"v_mov_b32 v{VM+1}, v{VM}")
        k.e("s_nop 1")
        k.e(f"v_permlane32_swap_b32 v{VM}, v{VM+1}")
        k.e(f"v_max_f32 v{VM}, v{VM}, v{VM+1}")
        for r in range(16):
            k.e(f"v_sub_f32 v{sc+r}, v{sc+r}, v{VM}")
            k.e(f"v_sub_f32 v{VC+r}, 0, v{VM}")
        for x in vreads(0):
            k.e(x)
        if not safe:
            k.stamp()
        k.e(f"s_mov_b32 s47, {NST//NS}")
        k.L.append(".p2align 6")
        k.lab(f"{name}_loop{tag}")
        for t in range(LT):
            sc = VS[t % 2]
            p = VP[t % 2]
            if (t + 2) % TPS == 0:
                sidx = ((t + 2) // TPS) % NS
                barrier_for_stage(sidx, None if safe else sidx % 4)
            if not safe and t % 4 == 0:
                lab = k.newlab("fresc")
                back = k.newlab("fback")
                k.e(f"v_cmp_lt_f32 vcc, 0x53800000, v{VLC}")
                k.e(f"s_cbranch_vccnz {lab}")
                k.lab(back)
                frescue.append((lab, back, t))
            k.e("s_waitcnt lgkmcnt(4)")
            sm = smfma(t + 1)
            pvm = pv(t - 1)
            rd = kreads((t + 2) % LT) + vreads(t % LT)
            va = []
            for r in range(16):
                va.append((f"v_exp_f32 v{sc+r}, v{sc+r}", 8.5))
                if r >= 3 and r % 2 == 1:
                    j = (r - 3) // 2
                    va.append((f"v_cvt_pk_bf16_f32 v{p+j}, v{sc+2*j}, v{sc+2*j+1}", 4.5))
            va.append((f"v_cvt_pk_bf16_f32 v{p+7}, v{sc+14}, v{sc+15}", 4.5))
            if safe:
                mx = maxtree(sc)
                k.e(sm[0])
                for x in mx[:4]:
                    k.e(x)
                k.e(sm[1])
                for x in mx[4:]:
                    k.e(x)
                lab = k.newlab("resc")
                back = k.newlab("back")
                k.e(f"v_cmp_lt_f32 vcc, {THR}, v{VM}")
                k.e(f"s_cbranch_vccnz {lab}")
                k.lab(back)
                rescue.append((lab, back, t))
                mf = pvm
                pre_wait = 0
            else:
                mf = sm + pvm
                pre_wait = 2
            tot = sum(c for _, c in va)
            nseg = len(mf)
            vi = 0
            acc_c = 0.0
            ri = 0
            for j, m in enumerate(mf):
                if j == pre_wait:
                    k.e("s_waitcnt lgkmcnt(0)")
                    if not safe and t % 4 == 3:
                        k.e(f"v_mov_b32 v{VLC}, v{VL}")
                k.e(m)
                tgt = tot * (j + 1) / nseg
                first_in_seg = True
                while vi < len(va) and (acc_c + va[vi][1] / 2 <= tgt or j == nseg - 1):
                    k.e(va[vi][0])
                    acc_c += va[vi][1]
                    vi += 1
                    if j >= pre_wait and ri < len(rd) and first_in_seg:
                        n_r = 2 if (j - pre_wait) in (0, 2) else 1
                        for _ in range(n_r):
                            if ri < len(rd):
                                k.e(rd[ri]); ri += 1
                        first_in_seg = False
            while ri < len(rd):
                k.e(rd[ri]); ri += 1
        if not safe:
            k.e(f"s_add_u32 s46, s46, {2*MB}")
        k.e("s_sub_u32 s47, s47, 1")
        k.e("s_cmp_lg_u32 s47, 0")
        k.e(f"s_cbranch_scc1 {name}_loop{tag}")
        if not safe:
            k.stamp()
        k.e("s_waitcnt lgkmcnt(0)")
        for x in pv(LT - 1):
            k.e(x)
        k.e("s_nop 15")
        k.e("s_nop 3")
        k.e(f"v_rcp_f32 v{VM}, v{VL}")
        k.e("s_nop 0")
        for r in range(16):
            k.e(f"v_mul_f32 v{VO+r}, v{VO+r}, v{VM}")

    if not FORCE_SAFE:
        body(False)
        k.e(f"v_cmp_ngt_f32 vcc, 0x71800000, v{VL}")
        k.e("s_nop 1")
        k.e(f"v_cndmask_b32 v{VM}, 0, 1, vcc")
        k.e(f"v_mov_b32 v{VM+2}, 0x7f800000")
        for r in range(16):
            k.e(f"v_and_b32 v{VM+1}, 0x7f800000, v{VO+r}")
            k.e(f"v_cmp_eq_u32 vcc, v{VM+1}, v{VM+2}")
            k.e("s_nop 1")
            k.e(f"v_cndmask_b32 v{VM}, v{VM}, 1, vcc")
        k.e(f"v_cmp_ne_u32 vcc, 0, v{VM}")
        k.e("s_cmp_lg_u64 vcc, 0")
        k.e("s_cselect_b32 s31, 1, 0")
        k.e(f"v_mov_b32 v{VM}, s31")
        k.e(f"v_mov_b32 v{VM+1}, {FLAG}")
        k.e("s_lshl_b32 s31, s30, 2")
        k.e(f"v_add_u32 v{VM+1}, s31, v{VM+1}")
        k.e(f"ds_write_b32 v{VM+1}, v{VM}")
        k.e("s_waitcnt vmcnt(0) lgkmcnt(0)")
        k.e("s_barrier")
        k.e(f"v_mov_b32 v{VM+1}, {FLAG}")
        k.e(f"ds_read_b128 v[{VP[0]}:{VP[0]+3}], v{VM+1}")
        k.e(f"ds_read_b128 v[{VP[0]+4}:{VP[0]+7}], v{VM+1} offset:16")
        k.e("s_waitcnt lgkmcnt(0)")
        k.e(f"v_or3_b32 v{VM}, v{VP[0]}, v{VP[0]+1}, v{VP[0]+2}")
        k.e(f"v_or3_b32 v{VM}, v{VM}, v{VP[0]+3}, v{VP[0]+4}")
        k.e(f"v_or3_b32 v{VM}, v{VM}, v{VP[0]+5}, v{VP[0]+6}")
        k.e(f"v_or_b32 v{VM}, v{VM}, v{VP[0]+7}")
        k.e("s_nop 0")
        k.e(f"v_readfirstlane_b32 s31, v{VM}")
        k.e("s_cmp_eq_u32 s31, 0")
        k.e(f"s_cbranch_scc1 {name}_store")
        k.e("s_barrier")
        start_loads()
    body(True)
    k.lab(f"{name}_store")
    P = VS[0]
    for g in range(4):
        k.e(f"v_cvt_pk_bf16_f32 v{P+2*g}, v{VO+4*g}, v{VO+4*g+1}")
        k.e(f"v_cvt_pk_bf16_f32 v{P+2*g+1}, v{VO+4*g+2}, v{VO+4*g+3}")
    k.e("s_nop 1")
    for gp in range(2):
        k.e(f"v_permlane32_swap_b32 v{P+4*gp}, v{P+4*gp+2}")
        k.e(f"v_permlane32_swap_b32 v{P+4*gp+1}, v{P+4*gp+3}")
    for gp in range(2):
        k.e(f"buffer_store_dwordx4 v[{P+4*gp}:{P+4*gp+3}], v{VT+4}, s[20:23], 0 offen offset:{gp*32}")
    k.e("s_waitcnt vmcnt(0)") if STAMP else None
    k.stamp()
    k.stamp_flush(30, VT)
    k.e("s_endpgm")
    for lab, back, t in rescue:
        sc = VS[t % 2]
        sn = VS[(t + 1) % 2]
        pp = VP[(t - 1) % 2]
        k.lab(lab)
        k.e(f"v_mov_b32 v{VM+1}, v{VM}")
        k.e("s_nop 1")
        k.e(f"v_permlane32_swap_b32 v{VM}, v{VM+1}")
        k.e(f"v_max_f32 v{VM}, v{VM}, v{VM+1}")
        k.e(f"v_max_f32 v{VM}, 0, v{VM}")
        k.e(f"v_ceil_f32 v{VM}, v{VM}")
        k.e("s_nop 15")
        k.e("s_nop 15")
        k.e(f"v_cvt_i32_f32 v{VM+2}, v{VM}")
        k.e(f"v_sub_u32 v{VM+2}, 0, v{VM+2}")
        k.e(f"v_ldexp_f32 v{VM+1}, 1.0, v{VM+2}")
        for r in range(16):
            k.e(f"v_sub_f32 v{sc+r}, v{sc+r}, v{VM}")
            k.e(f"v_sub_f32 v{VC+r}, v{VC+r}, v{VM}")
            k.e(f"v_sub_f32 v{sn+r}, v{sn+r}, v{VM}")
            k.e(f"v_mul_f32 v{VO+r}, v{VO+r}, v{VM+1}")
            k.e(f"v_mul_f32 v{VL+r}, v{VL+r}, v{VM+1}")
        for j in range(8):
            k.e(f"v_lshlrev_b32 v{VM+2}, 16, v{pp+j}")
            k.e(f"v_and_b32 v{VM+3}, 0xffff0000, v{pp+j}")
            k.e(f"v_mul_f32 v{VM+2}, v{VM+2}, v{VM+1}")
            k.e(f"v_mul_f32 v{VM+3}, v{VM+3}, v{VM+1}")
            k.e(f"v_cvt_pk_bf16_f32 v{pp+j}, v{VM+2}, v{VM+3}")
        k.e("s_nop 1")
        k.e(f"s_branch {back}")
    for lab, back, t in frescue:
        sc = VS[t % 2]
        pp = VP[(t - 1) % 2]
        k.lab(lab)
        k.e(f"v_frexp_exp_i32_f32 v{VM+2}, v{VLC}")
        k.e(f"v_max_i32 v{VM+2}, 0, v{VM+2}")
        k.e("s_nop 15")
        k.e("s_nop 15")
        k.e(f"v_cvt_f32_i32 v{VM}, v{VM+2}")
        k.e(f"v_sub_u32 v{VM+2}, 0, v{VM+2}")
        k.e(f"v_ldexp_f32 v{VM+1}, 1.0, v{VM+2}")
        for r in range(16):
            k.e(f"v_sub_f32 v{sc+r}, v{sc+r}, v{VM}")
            k.e(f"v_sub_f32 v{VC+r}, v{VC+r}, v{VM}")
            k.e(f"v_mul_f32 v{VO+r}, v{VO+r}, v{VM+1}")
            k.e(f"v_mul_f32 v{VL+r}, v{VL+r}, v{VM+1}")
        for j in range(8):
            k.e(f"v_lshlrev_b32 v{VM+2}, 16, v{pp+j}")
            k.e(f"v_and_b32 v{VM+3}, 0xffff0000, v{pp+j}")
            k.e(f"v_mul_f32 v{VM+2}, v{VM+2}, v{VM+1}")
            k.e(f"v_mul_f32 v{VM+3}, v{VM+3}, v{VM+1}")
            k.e(f"v_cvt_pk_bf16_f32 v{pp+j}, v{VM+2}, v{VM+3}")
        k.e(f"v_mov_b32 v{VLC}, 0")
        k.e("s_nop 1")
        k.e(f"s_branch {back}")
    k.lab(f"{name}_end")
    return k, dict(grid=NWG, block=512, lds=NS * STAGE + 256, vgpr=NV)
```

```python
from common import *


def wave_sum(k, v, tmp, sbase):
    k.e("s_nop 1")
    k.e(f"v_add_f32_dpp v{tmp}, v{v}, v{v} quad_perm:[1,0,3,2] row_mask:0xf bank_mask:0xf")
    k.e("s_nop 1")
    k.e(f"v_add_f32_dpp v{v}, v{tmp}, v{tmp} quad_perm:[2,3,0,1] row_mask:0xf bank_mask:0xf")
    k.e("s_nop 1")
    k.e(f"v_add_f32_dpp v{tmp}, v{v}, v{v} row_half_mirror row_mask:0xf bank_mask:0xf")
    k.e("s_nop 1")
    k.e(f"v_add_f32_dpp v{v}, v{tmp}, v{tmp} row_mirror row_mask:0xf bank_mask:0xf")
    k.e("s_nop 1")
    k.e(f"v_readlane_b32 s{sbase}, v{v}, 0")
    k.e(f"v_readlane_b32 s{sbase+1}, v{v}, 16")
    k.e(f"v_readlane_b32 s{sbase+2}, v{v}, 32")
    k.e(f"v_readlane_b32 s{sbase+3}, v{v}, 48")
    k.e("s_nop 1")
    k.e(f"v_mov_b32 v{v}, s{sbase}")
    k.e(f"v_add_f32 v{v}, s{sbase+1}, v{v}")
    k.e(f"v_add_f32 v{v}, s{sbase+2}, v{v}")
    k.e(f"v_add_f32 v{v}, s{sbase+3}, v{v}")


def bf16r(k, v, tmp):
    k.e(f"v_cvt_pk_bf16_f32 v{tmp}, v{v}, v{v}")
    k.e(f"v_lshlrev_b32 v{v}, 16, v{tmp}")


def gen_mod():
    k = Kern("mod_kernel")
    NWG = 192
    k.e(f"s_cmp_ge_u32 s2, {NWG}")
    k.e("s_cbranch_scc1 mod_kernel_end")
    k.e(f"s_load_dwordx2 s[4:5], s[0:1], {KA_C}")
    k.e(f"s_load_dwordx2 s[6:7], s[0:1], {KA_WMOD}")
    k.e(f"s_load_dwordx2 s[8:9], s[0:1], {KA_WS}")
    k.e("v_and_b32 v1, 3, v0")
    k.e("v_lshrrev_b32 v2, 2, v0")
    k.e("s_waitcnt lgkmcnt(0)")
    k.srd(12, 4, 5, 2048)
    k.srd(16, 6, 7, 1024 * 6144 * 2)
    k.srd_off(20, 8, 9, WS_MOD, 6144 * 4)
    k.e("v_lshlrev_b32 v3, 1, v2")
    k.e("v_mul_u32_u24 v4, 12288, v2")
    k.e("v_lshlrev_b32 v5, 4, v1")
    k.e("s_lshl_b32 s3, s2, 6")
    k.e("v_add3_u32 v4, v4, v5, s3")
    for i in range(16):
        k.e(f"s_mov_b32 s{24+i}, {i*64*12288}")
    CV = 16
    WV = 32
    AC = 96
    for i in range(16):
        k.e(f"buffer_load_ushort v{CV+i}, v3, s[12:15], 0 offen offset:{i*128}")
    for i in range(16):
        k.e(f"buffer_load_dwordx4 v[{WV+4*i}:{WV+4*i+3}], v4, s[16:19], s{24+i} offen")
    for j in range(8):
        k.e(f"v_mov_b32 v{AC+j}, 0")
    k.e("s_waitcnt vmcnt(16)")
    for i in range(16):
        c = CV + i
        k.e(f"v_lshlrev_b32 v{c}, 16, v{c}")
        k.e(f"v_mul_f32 v6, 0xbfb8aa3b, v{c}")
        k.e("v_exp_f32 v6, v6")
        k.e("s_nop 0")
        k.e("v_add_f32 v6, 1.0, v6")
        k.e("v_rcp_f32 v6, v6")
        k.e("s_nop 0")
        k.e(f"v_mul_f32 v{c}, v{c}, v6")
        bf16r(k, c, 6)
    for i in range(16):
        k.e(f"s_waitcnt vmcnt({15-i})")
        for j in range(4):
            w = WV + 4 * i + j
            k.e(f"v_lshlrev_b32 v6, 16, v{w}")
            k.e(f"v_and_b32 v7, 0xffff0000, v{w}")
            k.e(f"v_fmac_f32 v{AC+2*j}, v{CV+i}, v6")
            k.e(f"v_fmac_f32 v{AC+2*j+1}, v{CV+i}, v7")
    k.e("v_lshlrev_b32 v6, 5, v0")
    k.e(f"ds_write_b128 v6, v[{AC}:{AC+3}]")
    k.e(f"ds_write_b128 v6, v[{AC+4}:{AC+7}] offset:16")
    k.e("s_waitcnt lgkmcnt(0)")
    k.e("s_barrier")
    k.e("v_and_b32 v7, 31, v0")
    k.e("v_lshrrev_b32 v8, 5, v0")
    k.e("v_lshlrev_b32 v9, 10, v8")
    k.e("v_lshl_add_u32 v9, v7, 2, v9")
    for i in range(8):
        k.e(f"ds_read_b32 v{CV+i}, v9 offset:{i*128}")
    k.e("s_waitcnt lgkmcnt(0)")
    for i in range(1, 8):
        k.e(f"v_add_f32 v{CV}, v{CV}, v{CV+i}")
    k.e("s_barrier")
    k.e("v_lshlrev_b32 v9, 2, v0")
    k.e(f"ds_write_b32 v9, v{CV}")
    k.e("s_waitcnt lgkmcnt(0)")
    k.e("s_barrier")
    k.e("v_lshlrev_b32 v9, 2, v7")
    for i in range(8):
        k.e(f"ds_read_b32 v{CV+i}, v9 offset:{i*128}")
    k.e("s_waitcnt lgkmcnt(0)")
    for i in range(1, 8):
        k.e(f"v_add_f32 v{CV}, v{CV}, v{CV+i}")
    bf16r(k, CV, 6)
    k.e("v_cmp_gt_u32 vcc, 32, v0")
    k.e("s_and_saveexec_b64 s[40:41], vcc")
    k.e("s_cbranch_execz mod_kernel_end")
    k.e("s_lshl_b32 s3, s2, 7")
    k.e("v_lshl_add_u32 v9, v7, 2, s3")
    k.e(f"buffer_store_dword v{CV}, v9, s[20:23], 0 offen")
    k.lab("mod_kernel_end")
    return k, dict(grid=NWG, block=256, lds=8192, vgpr=104)


def gen_ln(name, src_is_ws, src_off, dst_off, shift_idx, prefetch_wqkv=False):
    k = Kern(name)
    NWG = 512
    k.e(f"s_cmp_ge_u32 s2, {NWG}")
    k.e(f"s_cbranch_scc1 {name}_end")
    k.e(f"s_load_dwordx2 s[4:5], s[0:1], {KA_X}")
    k.e(f"s_load_dwordx2 s[8:9], s[0:1], {KA_WS}")
    if prefetch_wqkv:
        k.e(f"s_load_dwordx2 s[40:41], s[0:1], {KA_WQKV}")
    k.e("v_and_b32 v1, 63, v0")
    k.e("v_lshrrev_b32 v2, 6, v0")
    k.e("s_waitcnt lgkmcnt(0)")
    if src_is_ws:
        k.srd_off(12, 8, 9, src_off, S * D * 2)
    else:
        k.srd(12, 4, 5, S * D * 2)
    k.srd_off(16, 8, 9, dst_off, S * D * 2)
    k.srd_off(20, 8, 9, WS_MOD + shift_idx * 4096, 8192)
    k.e("s_lshl_b32 s3, s2, 13")
    k.e("v_lshlrev_b32 v3, 11, v2")
    k.e("v_lshl_add_u32 v3, v1, 4, v3")
    k.e("v_add_u32 v3, s3, v3")
    k.e("v_lshlrev_b32 v4, 5, v1")
    k.e("s_mov_b32 s24, 4096")
    X = 8
    SH = 16
    SC = 32
    XF = 48
    k.e(f"buffer_load_dwordx4 v[{X}:{X+3}], v3, s[12:15], 0 offen")
    k.e(f"buffer_load_dwordx4 v[{X+4}:{X+7}], v3, s[12:15], 0 offen offset:1024")
    for i, off in enumerate([0, 16, 2048, 2064]):
        k.e(f"buffer_load_dwordx4 v[{SH+4*i}:{SH+4*i+3}], v4, s[20:23], 0 offen offset:{off}")
    for i, off in enumerate([0, 16, 2048, 2064]):
        k.e(f"buffer_load_dwordx4 v[{SC+4*i}:{SC+4*i+3}], v4, s[20:23], s24 offen offset:{off}")
    if prefetch_wqkv:
        k.srd(44, 40, 41, D * 3 * D * 2)
        k.e("s_mul_i32 s3, s2, 12288")
        k.e("v_mul_u32_u24 v64, 3072, v2")
        k.e("v_lshl_add_u32 v64, v1, 4, v64")
        k.e("v_add_u32 v64, s3, v64")
        for j in range(3):
            k.e(f"buffer_load_dwordx4 v[{68+4*j}:{71+4*j}], v64, s[44:47], 0 offen offset:{1024*j}")
        k.e("s_waitcnt vmcnt(11)")
    else:
        k.e("s_waitcnt vmcnt(8)")
    for i in range(8):
        k.e(f"v_lshlrev_b32 v{XF+2*i}, 16, v{X+i}")
        k.e(f"v_and_b32 v{XF+2*i+1}, 0xffff0000, v{X+i}")
    k.e(f"v_add_f32 v5, v{XF}, v{XF+1}")
    for i in range(2, 16):
        k.e(f"v_add_f32 v5, v5, v{XF+i}")
    wave_sum(k, 5, 6, 28)
    k.e("v_mul_f32 v5, 0x3a800000, v5")
    k.e("v_mov_b32 v7, 0")
    for i in range(16):
        k.e(f"v_sub_f32 v6, v{XF+i}, v5")
        k.e("v_fmac_f32 v7, v6, v6")
    wave_sum(k, 7, 6, 28)
    k.e("v_mul_f32 v7, 0x3a800000, v7")
    bf16r(k, 5, 6)
    bf16r(k, 7, 6)
    k.e("v_add_f32 v7, 0x3727c5ac, v7")
    bf16r(k, 7, 6)
    k.e("v_sqrt_f32 v7, v7")
    k.e("s_nop 0")
    bf16r(k, 7, 6)
    k.e("v_rcp_f32 v7, v7")
    k.e(f"s_waitcnt vmcnt({3 if prefetch_wqkv else 0})")
    for i in range(0, 16, 2):
        k.e(f"v_add_f32 v{SC+i}, 1.0, v{SC+i}")
        k.e(f"v_add_f32 v{SC+i+1}, 1.0, v{SC+i+1}")
        k.e(f"v_cvt_pk_bf16_f32 v6, v{SC+i}, v{SC+i+1}")
        k.e(f"v_lshlrev_b32 v{SC+i}, 16, v6")
        k.e(f"v_and_b32 v{SC+i+1}, 0xffff0000, v6")
    for i in range(0, 16, 2):
        a, b = XF + i, XF + i + 1
        k.e(f"v_sub_f32 v{a}, v{a}, v5")
        k.e(f"v_sub_f32 v{b}, v{b}, v5")
        k.e(f"v_cvt_pk_bf16_f32 v6, v{a}, v{b}")
        k.e(f"v_lshlrev_b32 v{a}, 16, v6")
        k.e(f"v_and_b32 v{b}, 0xffff0000, v6")
        k.e(f"v_mul_f32 v{a}, v{a}, v7")
        k.e(f"v_mul_f32 v{b}, v{b}, v7")
        k.e(f"v_cvt_pk_bf16_f32 v6, v{a}, v{b}")
        k.e(f"v_lshlrev_b32 v{a}, 16, v6")
        k.e(f"v_and_b32 v{b}, 0xffff0000, v6")
        k.e(f"v_mul_f32 v{a}, v{a}, v{SC+i}")
        k.e(f"v_mul_f32 v{b}, v{b}, v{SC+i+1}")
        k.e(f"v_cvt_pk_bf16_f32 v6, v{a}, v{b}")
        k.e(f"v_lshlrev_b32 v{a}, 16, v6")
        k.e(f"v_and_b32 v{b}, 0xffff0000, v6")
        k.e(f"v_add_f32 v{a}, v{a}, v{SH+i}")
        k.e(f"v_add_f32 v{b}, v{b}, v{SH+i+1}")
        k.e(f"v_cvt_pk_bf16_f32 v{X+i//2}, v{a}, v{b}")
    k.e(f"buffer_store_dwordx4 v[{X}:{X+3}], v3, s[16:19], 0 offen")
    k.e(f"buffer_store_dwordx4 v[{X+4}:{X+7}], v3, s[16:19], 0 offen offset:1024")
    k.lab(f"{name}_end")
    return k, dict(grid=NWG, block=256, lds=0, vgpr=80 if prefetch_wqkv else 64)
```
